```python
import torch

def _softmax(x, axis=-1):
    return torch.softmax(x, dim=axis)
def _gelu(x):
    return torch.nn.functional.gelu(x, approximate="tanh")
def _silu(x):
    return torch.nn.functional.silu(x)
def _sigmoid(x):
    return torch.sigmoid(x)
def _layernorm(x, axis=-1, eps=1e-5):
    m = x.mean(dim=axis, keepdim=True)
    v = x.var(dim=axis, keepdim=True, unbiased=False)
    return (x - m) / torch.sqrt(v + eps)
def _scatter_add(tgt, idx, src, axis=0):
    return tgt.clone().index_add_(axis, idx, src)
def _segment_sum(src, seg, n):
    out = torch.zeros((n,) + src.shape[1:], dtype=src.dtype)
    return out.index_add_(0, seg, src)
def _pad(x, pw):
    flat = tuple(v for pair in reversed(pw) for v in pair)
    return torch.nn.functional.pad(x, flat)

kernel_name = 'gated_mix__ssm_conv_s4__mixer_token_mlp__prompt'

def setup_inputs():

    _w = (lambda a: (lambda t: t.to(torch.bfloat16) if t.is_floating_point() else t)(torch.as_tensor(a)))
    def _A_setup():
        B, L, D, N = 1, 2048, 512, 128
        A_re = -(lambda _x: torch.exp(torch.as_tensor(_x)))((lambda *s: torch.randn(*s, dtype=torch.bfloat16) * 3.2)(D, N))
        A_im = torch.pi * (lambda *s: torch.randn(*s, dtype=torch.bfloat16) * 0.05)(D, N)
        B_re = (lambda *s: torch.randn(*s, dtype=torch.bfloat16) * 0.1)(D, N)
        B_im = (lambda *s: torch.randn(*s, dtype=torch.bfloat16) * 0.1)(D, N)
        C_re = (lambda *s: torch.randn(*s, dtype=torch.bfloat16) * 0.1)(D, N)
        C_im = (lambda *s: torch.randn(*s, dtype=torch.bfloat16) * 0.1)(D, N)
        log_dt = (lambda *s: torch.randn(*s, dtype=torch.bfloat16) * 0.05)(D) * 0.5 - 4.0
        Dskip = (lambda *s: torch.randn(*s, dtype=torch.bfloat16) * 0.05)(D)
        return {
            "u": _w((lambda *s: torch.randn(*s, dtype=torch.bfloat16) * 0.05)(B, L, D)),
            "A_re": _w(A_re),
            "A_im": _w(A_im),
            "B_re": _w(B_re),
            "B_im": _w(B_im),
            "C_re": _w(C_re),
            "C_im": _w(C_im),
            "log_dt": _w(log_dt),
            "Dskip": _w(Dskip),
        }
    _A_in = _A_setup()

    def _B_setup():
        B, S, D, F = 1, 2048, 512, 1792
        return {
            "x": _w((lambda *s: torch.randn(*s, dtype=torch.bfloat16) * 0.05)(B, S, D)),
            "w1": _w((lambda *s: torch.randn(*s, dtype=torch.bfloat16) * 0.2)(S, F) * (S ** -0.5)),
            "b1": _w((lambda *s: torch.randn(*s, dtype=torch.bfloat16) * 3.2)(F) * 0.02),
            "w2": _w((lambda *s: torch.randn(*s, dtype=torch.bfloat16) * 0.05)(F, S) * (F ** -0.5)),
            "b2": _w((lambda *s: torch.randn(*s, dtype=torch.bfloat16) * 0.1)(S) * 0.02),
        }
    _B_in = _B_setup()

    return {
        "A_u": _A_in["u"],
        "A_A_re": _A_in["A_re"],
        "A_A_im": _A_in["A_im"],
        "A_B_re": _A_in["B_re"],
        "A_B_im": _A_in["B_im"],
        "A_C_re": _A_in["C_re"],
        "A_C_im": _A_in["C_im"],
        "A_log_dt": _A_in["log_dt"],
        "A_Dskip": _A_in["Dskip"],
        "B_x": _B_in["x"],
        "B_w1": _B_in["w1"],
        "B_b1": _B_in["b1"],
        "B_w2": _B_in["w2"],
        "B_b2": _B_in["b2"],
        "gate_w": _w((lambda *s: torch.randn(*s, dtype=torch.bfloat16) * 0.05)(512) * 16.0),
    }

def reference(A_u, A_A_re, A_A_im, A_B_re, A_B_im, A_C_re, A_C_im, A_log_dt, A_Dskip, B_x, B_w1, B_b1, B_w2, B_b2, gate_w):
    def _A_ref(u, A_re, A_im, B_re, B_im, C_re, C_im, log_dt, Dskip):
        Bsz, L, D = u.shape
        dt = torch.exp(log_dt)[:, None]
        A = A_re + 1j * A_im
        Bc = B_re + 1j * B_im
        Cc = C_re + 1j * C_im
        logdA = dt * A
        dB = dt * Bc
        l = (lambda x, dt: x.to(dt))(torch.arange(L), A_re.dtype)
        P = torch.exp(logdA[:, :, None] * l[None, None, :])
        K = torch.einsum("dn,dnl,dn->dl", Cc, P, dB).real
        L2 = 2 * L
        Kp = _pad(K, ((0, 0), (0, L)))
        up = (lambda x, *d: x.permute(*d))(u, 0, 2, 1)
        up = _pad(up, ((0, 0), (0, 0), (0, L)))
        Kf = (lambda x, axes=(-2,-1): torch.fft.rfft2(x.float(), dim=axes))(Kp[:, None, :], axes=(-2, -1))
        Uf = (lambda x, axes=(-2,-1): torch.fft.rfft2(x.float(), dim=axes))(up[:, :, None, :], axes=(-2, -1))
        Yf = Uf * Kf[None, :, :, :]
        y = (lambda x, s, axes=(-2,-1): torch.fft.irfft2(x, s=s, dim=axes).to(torch.bfloat16))(Yf, (1, L2), axes=(-2, -1))[:, :, 0, :L]
        y = (lambda x, *d: x.permute(*d))(y, 0, 2, 1) + u * Dskip[None, None, :]
        return y

    def _B_ref(x, w1, b1, w2, b2):
        B, S, D = x.shape
        h = _layernorm(x, axis=-1)
        u = torch.einsum("bsd,sf->bdf", h, w1) + b1
        u = _gelu(u)
        y = torch.einsum("bdf,fs->bds", u, w2) + b2
        return (lambda x, *d: x.permute(*d))(y, 0, 2, 1)

    x = A_u
    g = _sigmoid((x * gate_w).sum(-1, keepdims=True))
    a = _A_ref(x, A_A_re, A_A_im, A_B_re, A_B_im, A_C_re, A_C_im, A_log_dt, A_Dskip)
    b = _B_ref(x, B_w1, B_b1, B_w2, B_b2)
    return g * a + (1 - g) * b
```

```python
import sys, struct

NAME = "gated_mix__ssm_conv_s4__mixer_token_mlp__prompt"

L = 2048; D = 512; N = 128; F = 1792
WS_HT = 0
WS_UT = 2 << 20
WS_G  = 4 << 20
RROW  = 2304
WS_RH = (4 << 20) + 65536
WS_RL = WS_RH + D * RROW * 2
WS_U1 = WS_RL + D * RROW * 2
WS_AT = WS_U1 + D * F * 2
WS_END = WS_AT + D * L * 2
assert WS_U1 % 4096 == 0 and WS_AT % 4096 == 0

def f32bits(x):
    return struct.unpack("<I", struct.pack("<f", x))[0]

class Asm:
    def __init__(self):
        self.lines = []
    def __call__(self, s):
        self.lines.append("    " + s)
    def label(self, l):
        self.lines.append(l + ":")
    def raw(self, s):
        self.lines.append(s)
    def nop(self, n):
        while n > 0:
            k = min(n, 16)
            self(f"s_nop {k-1}")
            n -= k
    def text(self):
        return "\n".join(self.lines) + "\n"

def vr(a, n=1):
    return f"v{a}" if n == 1 else f"v[{a}:{a+n-1}]"
def sr(a, n=1):
    return f"s{a}" if n == 1 else f"s[{a}:{a+n-1}]"

def srd(A, d, base, nbytes):
    A(f"s_mov_b32 s{d}, s{base}")
    A(f"s_and_b32 s{d+1}, s{base+1}, 0xffff")
    A(f"s_mov_b32 s{d+2}, {nbytes}")
    A(f"s_mov_b32 s{d+3}, 0x00020000")

LOG2E = 1.4426950408889634
INV2PI = 0.15915494309189535

K1_PREP = 64
K1_GRID = K1_PREP + D
LS = 1056
LDS_X = 0
LDS_H = 32 * LS
K1_LDS = 2 * 32 * LS

def gen_k1(A):
    A.raw(".p2align 8")
    A.label("k1_kernel")
    A(f"s_cmp_ge_u32 s2, {K1_GRID}")
    A("s_cbranch_scc1 k1_done")
    A("s_load_dwordx2 s[8:9], s[0:1], 136")
    A(f"s_cmp_ge_u32 s2, {K1_PREP}")
    A("s_cbranch_scc1 k1_kgen")
    A("s_load_dwordx2 s[4:5], s[0:1], 0")
    A("s_load_dwordx2 s[6:7], s[0:1], 112")
    A("v_lshrrev_b32 v1, 3, v0")
    A("v_and_b32 v2, 7, v0")
    A("s_lshl_b32 s3, s2, 5")
    A("v_add_u32 v3, s3, v1")
    A("v_lshlrev_b32 v3, 10, v3")
    A("v_lshl_add_u32 v3, v2, 4, v3")
    A("v_lshlrev_b32 v4, 4, v2")
    A("s_waitcnt lgkmcnt(0)")
    srd(A, 12, 4, L * D * 2)
    srd(A, 16, 6, D * 2)
    srd(A, 20, 8, WS_END)
    X = 8; G = 40
    for j in range(8):
        A(f"buffer_load_dwordx4 {vr(X+4*j,4)}, v3, s[12:15], 0 offen offset:{128*j}")
    for j in range(8):
        A(f"buffer_load_dwordx4 {vr(G+4*j,4)}, v4, s[16:19], 0 offen offset:{128*j}")
    A(f"v_mul_u32_u24 v5, {LS}, v1")
    A("v_lshl_add_u32 v5, v2, 4, v5")
    A("v_mov_b32 v72, 0")
    A("v_mov_b32 v73, 0")
    A("s_mov_b32 s24, 0xffff0000")
    A("s_waitcnt vmcnt(0)")
    for j in range(8):
        A(f"ds_write_b128 v5, {vr(X+4*j,4)} offset:{LDS_X+128*j}")
    for i in range(32):
        A(f"v_lshlrev_b32 v74, 16, v{X+i}")
        A(f"v_and_b32 v75, s24, v{X+i}")
        A(f"v_lshlrev_b32 v76, 16, v{G+i}")
        A(f"v_and_b32 v77, s24, v{G+i}")
        A("v_add_f32 v72, v72, v74")
        A("v_mul_f32 v76, v74, v76")
        A("v_add_f32 v72, v72, v75")
        A("v_mul_f32 v77, v75, v77")
        A("v_cvt_pk_bf16_f32 v76, v76, v77")
        A("v_lshlrev_b32 v77, 16, v76")
        A("v_and_b32 v76, s24, v76")
        A("v_add_f32 v73, v73, v77")
        A("v_add_f32 v73, v73, v76")
    def red8(r):
        for m in ("quad_perm:[1,0,3,2]", "quad_perm:[2,3,0,1]", "row_half_mirror"):
            A.nop(2)
            A(f"v_add_f32_dpp v78, v{r}, v{r} {m} row_mask:0xf bank_mask:0xf")
            A(f"v_mov_b32 v{r}, v78")
    red8(72); red8(73)
    A(f"v_mul_f32 v72, {f32bits(1.0/512):#x}, v72")
    A("v_mov_b32 v79, 0")
    for i in range(32):
        A(f"v_lshlrev_b32 v74, 16, v{X+i}")
        A(f"v_and_b32 v75, s24, v{X+i}")
        A("v_sub_f32 v74, v74, v72")
        A("v_sub_f32 v75, v75, v72")
        A("v_fmac_f32 v79, v74, v74")
        A("v_fmac_f32 v79, v75, v75")
    red8(79)
    A(f"v_mul_f32 v79, {f32bits(1.0/512):#x}, v79")
    A("v_cvt_pk_bf16_f32 v74, v72, v79")
    A("v_lshlrev_b32 v72, 16, v74")
    A("v_and_b32 v79, s24, v74")
    A(f"v_add_f32 v79, {f32bits(1e-5):#x}, v79")
    A("v_cvt_pk_bf16_f32 v74, v79, v73")
    A("v_lshlrev_b32 v79, 16, v74")
    A("v_and_b32 v73, s24, v74")
    A("v_sqrt_f32 v79, v79")
    A(f"v_mul_f32 v73, {f32bits(-LOG2E):#x}, v73")
    A("v_exp_f32 v73, v73")
    A("v_cvt_pk_bf16_f32 v74, v79, v79")
    A("v_lshlrev_b32 v79, 16, v74")
    A("v_add_f32 v73, 1.0, v73")
    A("v_rcp_f32 v79, v79")
    A("v_rcp_f32 v73, v73")
    A.nop(1)
    A("v_cvt_pk_bf16_f32 v74, v73, v73")
    A("v_lshlrev_b32 v73, 16, v74")
    A("v_add_u32 v6, s3, v1")
    A("v_lshlrev_b32 v6, 2, v6")
    A("v_cmp_eq_u32 vcc, 0, v2")
    A("s_and_saveexec_b64 s[26:27], vcc")
    A(f"s_mov_b32 s25, {WS_G}")
    A("buffer_store_dword v73, v6, s[20:23], s25 offen")
    A("s_mov_b64 exec, s[26:27]")
    for i in range(32):
        A(f"v_lshlrev_b32 v74, 16, v{X+i}")
        A(f"v_and_b32 v75, s24, v{X+i}")
        A("v_sub_f32 v74, v74, v72")
        A("v_sub_f32 v75, v75, v72")
        A("v_cvt_pk_bf16_f32 v74, v74, v75")
        A("v_lshlrev_b32 v75, 16, v74")
        A("v_and_b32 v74, s24, v74")
        A("v_mul_f32 v75, v75, v79")
        A("v_mul_f32 v74, v74, v79")
        A(f"v_cvt_pk_bf16_f32 v{G+i}, v75, v74")
    for j in range(8):
        A(f"ds_write_b128 v5, {vr(G+4*j,4)} offset:{LDS_H+128*j}")
    A("v_lshrrev_b32 v1, 6, v0")
    A("v_bfe_u32 v2, v0, 4, 2")
    A("v_and_b32 v3, 15, v0")
    A("v_lshrrev_b32 v4, 2, v3")
    A("v_and_b32 v5, 3, v0")
    A("v_lshl_add_u32 v6, v2, 3, v4")
    A(f"v_mul_u32_u24 v6, {LS}, v6")
    A("v_lshl_add_u32 v6, v1, 8, v6")
    A("v_lshl_add_u32 v6, v5, 3, v6")
    A("v_lshl_add_u32 v7, v1, 9, v2")
    A("v_lshlrev_b32 v7, 10, v7")
    A("v_lshl_add_u32 v7, v3, 4, v7")
    A("s_lshl_b32 s25, s2, 12")
    A("v_add_u32 v7, s25, v7")
    A("v_lshl_add_u32 v8, v1, 7, v3")
    A("v_lshlrev_b32 v8, 12, v8")
    A("v_lshl_add_u32 v8, v2, 4, v8")
    A("s_lshl_b32 s25, s2, 6")
    A("v_add_u32 v8, s25, v8")
    A("s_waitcnt lgkmcnt(0)")
    A("s_barrier")
    for it in range(8):
        b = 12 + 8 * it
        A(f"ds_read_b64_tr_b16 {vr(b,2)}, v6 offset:{LDS_H + it*32}")
        A(f"ds_read_b64_tr_b16 {vr(b+2,2)}, v6 offset:{LDS_H + it*32 + 4*LS}")
        A(f"ds_read_b64_tr_b16 {vr(b+4,2)}, v6 offset:{LDS_X + it*32}")
        A(f"ds_read_b64_tr_b16 {vr(b+6,2)}, v6 offset:{LDS_X + it*32 + 4*LS}")
    for it in range(8):
        b = 12 + 8 * it
        A(f"s_mov_b32 s25, {WS_HT + (it>>2)*262144}")
        A(f"s_mov_b32 s28, {WS_UT + it*65536}")
        A(f"s_waitcnt lgkmcnt({min(15, 4*(7-it))})")
        A(f"buffer_store_dwordx4 {vr(b,4)}, v7, s[20:23], s25 offen offset:{(it&3)*256}")
        A(f"buffer_store_dwordx4 {vr(b+4,4)}, v8, s[20:23], s28 offen")
    A("s_branch k1_done")

    A.label("k1_kgen")
    A(f"s_sub_u32 s3, s2, {K1_PREP}")
    A("s_load_dwordx4 s[12:15], s[0:1], 8")
    A("s_load_dwordx4 s[16:19], s[0:1], 24")
    A("s_load_dwordx4 s[24:27], s[0:1], 40")
    A("s_load_dwordx2 s[28:29], s[0:1], 56")
    A("v_and_b32 v1, 15, v0")
    A("v_bfe_u32 v2, v0, 4, 2")
    A("v_lshrrev_b32 v3, 6, v0")
    A("v_lshlrev_b32 v4, 6, v3")
    A("v_lshl_add_u32 v4, v2, 4, v4")
    A("s_lshl_b32 s4, s3, 8")
    A("v_add_u32 v4, s4, v4")
    A("s_lshl_b32 s5, s3, 1")
    A("v_mov_b32 v5, s5")
    A("s_waitcnt lgkmcnt(0)")
    srd(A, 20, 8, WS_END)
    P = 8
    for k, sb in enumerate((12, 14, 16, 18, 24, 26)):
        A(f"global_load_dwordx4 {vr(P+4*k,4)}, v4, s[{sb}:{sb+1}]")
    A("global_load_ushort v6, v5, s[28:29]")
    A("v_lshlrev_b32 v32, 3, v1")
    A("v_cvt_f32_u32 v32, v32")
    A("v_and_b32 v33, 7, v1")
    A("v_lshrrev_b32 v34, 3, v1")
    A("v_lshl_add_u32 v33, v34, 7, v33")
    A("v_cvt_f32_u32 v33, v33")
    A("v_and_b32 v34, 3, v1")
    A("v_lshlrev_b32 v34, 1, v34")
    A("v_lshrrev_b32 v35, 2, v1")
    A("v_lshl_add_u32 v34, v35, 7, v34")
    A("v_add_u32 v34, 256, v34")
    A("v_and_b32 v35, 1, v1")
    A("v_lshlrev_b32 v35, 2, v35")
    A("v_bfe_u32 v36, v1, 1, 2")
    A("v_lshl_add_u32 v35, v36, 7, v35")
    A("v_add_u32 v35, 512, v35")
    A("v_cmp_gt_u32 vcc, 8, v1")
    A.nop(2)
    A("v_cndmask_b32 v34, v35, v34, vcc")
    A("v_cvt_f32_u32 v34, v34")
    A("v_min_u32 v35, 8, v1")
    A("v_lshlrev_b32 v35, 7, v35")
    A("v_add_u32 v35, 1024, v35")
    A("v_cvt_f32_u32 v35, v35")
    for r in range(12):
        A(f"v_mov_b32 v{40+r}, 0")
    A("s_mov_b32 s30, 0xffff0000")
    A("s_waitcnt vmcnt(0)")
    A("v_lshlrev_b32 v6, 16, v6")
    A(f"s_mov_b32 s31, {f32bits(LOG2E):#x}")
    A("v_mul_f32 v7, s31, v6")
    A("v_fma_f32 v36, v6, s31, -v7")
    l2e_lo = LOG2E - struct.unpack("<f", struct.pack("<f", LOG2E))[0]
    A(f"v_fmac_f32 v36, {f32bits(l2e_lo):#x}, v6")
    A("v_exp_f32 v7, v7")
    A(f"v_mul_f32 v36, {f32bits(0.6931471805599453):#x}, v36")
    A("v_fma_f32 v7, v7, v36, v7")
    A("v_cvt_pk_bf16_f32 v7, v7, v7")
    A("v_lshlrev_b32 v7, 16, v7")
    A(f"s_mov_b32 s4, {f32bits(INV2PI):#x}")
    for q in range(8):
        def unp(dst, k):
            src = P + 4 * k + (q >> 1)
            if q & 1:
                A(f"v_and_b32 v{dst}, s30, v{src}")
            else:
                A(f"v_lshlrev_b32 v{dst}, 16, v{src}")
        unp(52, 0); unp(53, 1); unp(54, 2); unp(55, 3); unp(56, 4); unp(57, 5)
        A("v_mul_f32 v52, v7, v52")
        A("v_mul_f32 v53, v7, v53")
        A("v_mul_f32 v54, v7, v54")
        A("v_mul_f32 v55, v7, v55")
        A("v_mul_f32 v52, s31, v52")
        A("v_mul_f32 v53, s4, v53")
        A("v_mul_f32 v58, v56, v54")
        A("v_fma_f32 v58, -v57, v55, v58")
        A("v_mul_f32 v59, v56, v55")
        A("v_fmac_f32 v59, v57, v54")
        for e, src in enumerate((32, 33, 34, 35)):
            A(f"v_mul_f32 v{60+e}, v{src}, v52")
            A(f"v_mul_f32 v{64+e}, v{src}, v53")
        for e in range(4):
            A(f"v_exp_f32 v{60+e}, v{60+e}")
            A(f"v_fract_f32 v{64+e}, v{64+e}")
        for e in range(4):
            A(f"v_sin_f32 v{68+e}, v{64+e}")
            A(f"v_cos_f32 v{64+e}, v{64+e}")
        A.nop(1)
        for e in range(4):
            A(f"v_mul_f32 v{68+e}, v{60+e}, v{68+e}")
            A(f"v_mul_f32 v{64+e}, v{60+e}, v{64+e}")
        A("v_mul_f32 v72, v58, v64")
        A("v_fma_f32 v72, -v59, v68, v72")
        A("v_mul_f32 v73, v58, v68")
        A("v_fma_f32 v73, v59, v64, v73")
        A("v_xor_b32 v73, 0x80000000, v73")
        A.nop(2)
        for b in range(3):
            A(f"v_mfma_f32_16x16x4_f32 {vr(40+4*b,4)}, v{65+b}, v72, {vr(40+4*b,4)}")
        for b in range(3):
            A(f"v_mfma_f32_16x16x4_f32 {vr(40+4*b,4)}, v{69+b}, v73, {vr(40+4*b,4)}")
    A.nop(12)
    A("v_mul_u32_u24 v4, 3072, v3")
    A("v_lshl_add_u32 v4, v2, 8, v4")
    A("v_lshl_add_u32 v4, v1, 2, v4")
    for b in range(3):
        for r in range(4):
            A(f"ds_write_b32 v4, v{40+4*b+r} offset:{(16*b + r)*64}")
    A("s_waitcnt lgkmcnt(0)")
    A("s_barrier")
    A("v_lshlrev_b32 v4, 2, v0")
    for e in range(3):
        for w in range(4):
            A(f"ds_read_b32 v{8+4*e+w}, v4 offset:{w*3072 + e*1024}")
    A("s_waitcnt lgkmcnt(0)")
    for e in range(3):
        A(f"v_add_f32 v{8+4*e}, v{8+4*e}, v{9+4*e}")
        A(f"v_add_f32 v{10+4*e}, v{10+4*e}, v{11+4*e}")
        A(f"v_add_f32 v{8+4*e}, v{8+4*e}, v{10+4*e}")
        A(f"ds_write_b32 v4, v{8+4*e} offset:{12288 + e*1024}")
    A("s_waitcnt lgkmcnt(0)")
    A("s_barrier")
    A(f"s_mul_i32 s4, s3, {RROW*2}")
    A(f"s_add_u32 s5, s4, {WS_RH}")
    A(f"s_add_u32 s6, s4, {WS_RL}")
    for ps in range(2):
        if ps == 1:
            A("v_cmp_gt_u32 vcc, 32, v0")
            A("s_and_saveexec_b64 s[26:27], vcc")
            A("s_cbranch_execz k1_exp_end")
        A(f"v_lshlrev_b32 v4, 3, v0")
        A(f"v_sub_u32 v4, {2047 - 2048*ps}, v4")
        for e in range(8):
            A(f"v_subrev_u32 v{8+e}, {e}, v4")
            A(f"v_max_i32 v{16+e}, 0, v{8+e}")
            A(f"v_cvt_f32_u32 v{16+e}, v{16+e}")
        for e in range(0, 8, 2):
            A(f"v_cvt_pk_bf16_f32 v24, v{16+e}, v{17+e}")
            A(f"v_lshlrev_b32 v{16+e}, 16, v24")
            A(f"v_and_b32 v{17+e}, s30, v24")
        for e in range(8):
            A(f"v_cvt_u32_f32 v24, v{16+e}")
            A(f"v_lshrrev_b32 v25, 23, v{16+e}")
            A("v_subrev_u32 v25, 134, v25")
            A("v_med3_i32 v25, v25, 0, 3")
            A("v_lshrrev_b32 v26, 7, v24")
            A("v_and_b32 v27, 7, v24")
            A("v_lshl_or_b32 v26, v26, 3, v27")
            A("v_lshrrev_b32 v26, v25, v26")
            A("v_lshl_add_u32 v26, v25, 3, v26")
            A("v_bfe_u32 v27, v24, 3, 4")
            A("v_lshl_add_u32 v26, v26, 4, v27")
            A("v_lshlrev_b32 v26, 2, v26")
            A(f"ds_read_b32 v{16+e}, v26 offset:12288")
        A("s_waitcnt lgkmcnt(0)")
        for e in range(8):
            A(f"v_cmp_le_i32 vcc, 0, v{8+e}")
            A.nop(2)
            A(f"v_cndmask_b32 v{16+e}, 0, v{16+e}, vcc")
        for e in range(0, 8, 2):
            A(f"v_cvt_pk_bf16_f32 v{28+e//2}, v{16+e}, v{17+e}")
            A(f"v_lshlrev_b32 v24, 16, v{28+e//2}")
            A(f"v_and_b32 v25, s30, v{28+e//2}")
            A(f"v_sub_f32 v24, v{16+e}, v24")
            A(f"v_sub_f32 v25, v{17+e}, v25")
            A(f"v_cvt_pk_bf16_f32 v{32+e//2}, v24, v25")
        A(f"v_lshlrev_b32 v5, 4, v0")
        A(f"buffer_store_dwordx4 v[28:31], v5, s[20:23], s5 offen offset:0" if ps == 0 else
          f"v_add_u32 v5, 4096, v5")
        if ps == 1:
            A(f"buffer_store_dwordx4 v[28:31], v5, s[20:23], s5 offen")
        A(f"buffer_store_dwordx4 v[32:35], v5, s[20:23], s6 offen")
        A.nop(2)
    A.label("k1_exp_end")
    A.label("k1_done")
    A("s_endpgm")

NST = 4
STB = 4096
WREG = NST * STB

def gemm_body(A, tag, KTOT, rowB, a_tile_chunks, sA, sB, s_at, s_bt):
    KW = KTOT // 4
    NS = KW // 16
    A("v_and_b32 v1, 63, v0")
    A("v_lshrrev_b32 v2, 6, v0")
    A.nop(1)
    A("v_readfirstlane_b32 s40, v2")
    A("v_lshlrev_b32 v3, 4, v1")
    A("v_lshrrev_b32 v4, 3, v1")
    A("v_and_b32 v5, 7, v1")
    A("v_lshlrev_b32 v6, 1, v4")
    A("v_and_b32 v6, 4, v6")
    A("v_xor_b32 v5, v5, v6")
    A(f"s_mov_b32 s41, {rowB}")
    A("v_mul_lo_u32 v4, v4, s41")
    A("v_lshl_add_u32 v4, v5, 4, v4")
    A(f"v_add_u32 v5, {8*rowB - 1024}, v4")
    A("v_and_b32 v6, 31, v1")
    A("v_lshrrev_b32 v7, 5, v1")
    A("v_lshlrev_b32 v6, 4, v6")
    A("v_lshl_add_u32 v6, v7, 10, v6")
    A("v_bfe_u32 v8, v1, 2, 2")
    A("v_lshl_add_u32 v9, v7, 3, v8")
    A("v_lshlrev_b32 v9, 7, v9")
    A("v_lshrrev_b32 v10, 1, v8")
    A("v_lshl_add_u32 v9, v10, 6, v9")
    A("v_bfe_u32 v10, v1, 4, 1")
    A("v_lshl_add_u32 v9, v10, 5, v9")
    A("v_bfe_u32 v10, v1, 1, 1")
    A("v_lshl_add_u32 v9, v10, 4, v9")
    A("v_and_b32 v10, 1, v1")
    A("v_lshl_add_u32 v9, v10, 3, v9")
    A("v_add_u32 v9, 2048, v9")
    A("v_xor_b32 v10, 64, v9")
    A(f"s_mul_i32 s42, s40, {WREG}")
    A("v_add_u32 v6, s42, v6")
    A("v_add_u32 v9, s42, v9")
    A("v_add_u32 v10, s42, v10")
    A(f"s_mul_i32 s43, s40, {KW//8*1024}")
    A(f"s_add_u32 s43, s43, s{s_at}")
    A(f"s_mul_i32 s44, s40, {KW*rowB}")
    A(f"s_add_u32 s44, s44, s{s_bt}")
    ACC = 64
    for i in range(64):
        A(f"v_mov_b32 v{ACC+i}, 0")
    FR = 16
    def dma(j):
        slot = (j % NST) * STB
        A(f"s_add_u32 s45, s42, {slot}")
        A("s_mov_b32 m0, s45")
        A(f"s_add_u32 s45, s42, {slot+2048}")
        A(f"buffer_load_dwordx4 v3, s[{sA}:{sA+3}], s43 offen lds")
        A(f"buffer_load_dwordx4 v3, s[{sA}:{sA+3}], s43 offen offset:1024 lds")
        A("s_mov_b32 m0, s45")
        A("s_add_u32 s43, s43, 2048")
        A(f"buffer_load_dwordx4 v4, s[{sB}:{sB+3}], s44 offen lds")
        A(f"buffer_load_dwordx4 v5, s[{sB}:{sB+3}], s44 offen offset:1024 lds")
        A(f"s_add_u32 s44, s44, {16*rowB}")
    def rd(j):
        slot = (j % NST) * STB
        f = FR + 16 * (j & 1)
        A(f"ds_read_b128 {vr(f,4)}, v6 offset:{slot}")
        A(f"ds_read_b128 {vr(f+4,4)}, v6 offset:{slot+512}")
        A(f"ds_read_b64_tr_b16 {vr(f+8,2)}, v9 offset:{slot}")
        A(f"ds_read_b64_tr_b16 {vr(f+10,2)}, v9 offset:{slot+512}")
        A(f"ds_read_b64_tr_b16 {vr(f+12,2)}, v10 offset:{slot}")
        A(f"ds_read_b64_tr_b16 {vr(f+14,2)}, v10 offset:{slot+512}")
    LOOK = NST - 1
    for j in range(LOOK):
        dma(j)
    A(f"s_waitcnt vmcnt({4*(LOOK-1)})")
    rd(0)
    for j in range(NS):
        if j + LOOK < NS:
            dma(j + LOOK)
        if j + 1 < NS:
            last_issued = min(j + LOOK, NS - 1)
            A(f"s_waitcnt vmcnt({4*(last_issued-(j+1))})")
            rd(j + 1)
            A("s_waitcnt lgkmcnt(6)")
        else:
            A("s_waitcnt lgkmcnt(0)")
        f = FR + 16 * (j & 1)
        for blk in range(2):
            for nb in range(2):
                acc = ACC + 16 * (2 * blk + nb)
                A(f"v_mfma_f32_32x32x16_bf16 {vr(acc,16)}, {vr(f+8+4*nb,4)}, {vr(f+4*blk,4)}, {vr(acc,16)}")
    A.nop(16)
    A("v_and_b32 v11, 31, v1")
    A("v_and_b32 v12, 15, v1")
    A("v_lshrrev_b32 v13, 5, v1")
    A("v_xor_b32 v12, v12, v13")
    A("v_lshlrev_b32 v11, 8, v11")
    A("v_add_u32 v11, s42, v11")
    for blk in range(2):
        for nb in range(2):
            for g in range(4):
                acc = ACC + 16 * (2 * blk + nb) + 4 * g
                cbase = 8 * nb + 2 * g
                A(f"v_xor_b32 v14, {cbase}, v12")
                A("v_lshl_add_u32 v14, v14, 4, v11")
                A(f"ds_write_b128 v14, {vr(acc,4)} offset:{blk*32*256}")
    A("s_waitcnt lgkmcnt(0)")
    A("s_barrier")
    A("v_lshrrev_b32 v11, 2, v0")
    A("v_and_b32 v12, 3, v0")
    A("v_and_b32 v13, 15, v11")
    A("v_lshlrev_b32 v14, 2, v12")
    A("v_xor_b32 v13, v13, v14")
    A("v_lshlrev_b32 v14, 8, v11")
    for c in range(4):
        A(f"v_xor_b32 v15, {c}, v13")
        A("v_lshl_add_u32 v15, v15, 4, v14")
        for w in range(4):
            A(f"ds_read_b128 {vr(64+16*c+4*w,4)}, v15 offset:{w*WREG}")
    for c in range(4):
        A(f"s_waitcnt lgkmcnt({12-4*c})")
        b = 64 + 16 * c
        for e in range(4):
            A(f"v_add_f32 v{b+e}, v{b+e}, v{b+4+e}")
            A(f"v_add_f32 v{b+8+e}, v{b+8+e}, v{b+12+e}")
            A(f"v_add_f32 v{16+4*c+e}, v{b+e}, v{b+8+e}")

def bf16r_pair(A, a, b, tmp, smask):
    A(f"v_cvt_pk_bf16_f32 v{tmp}, v{a}, v{b}")
    A(f"v_lshlrev_b32 v{a}, 16, v{tmp}")
    A(f"v_and_b32 v{b}, s{smask}, v{tmp}")

K2_GEMM = 224
K2_GRID = K2_GEMM + D
UC = 4160
LDS_R = 8 * UC
K2_LDS = 4 * WREG

def gen_k2(A):
    A.raw(".p2align 8")
    A.label("k2_kernel")
    A(f"s_cmp_ge_u32 s2, {K2_GRID}")
    A("s_cbranch_scc1 k2_done")
    A("s_load_dwordx2 s[8:9], s[0:1], 136")
    A(f"s_cmp_ge_u32 s2, {K2_GEMM}")
    A("s_cbranch_scc1 k2_conv")
    A("s_load_dwordx4 s[4:7], s[0:1], 80")
    A("s_and_b32 s3, s2, 7")
    A("s_lshr_b32 s10, s2, 3")
    A("s_and_b32 s11, s3, 1")
    A("s_lshl_b32 s11, s11, 2")
    A("s_and_b32 s46, s10, 3")
    A("s_add_u32 s46, s46, s11")
    A("s_lshr_b32 s11, s3, 1")
    A("s_mul_i32 s11, s11, 7")
    A("s_lshr_b32 s47, s10, 2")
    A("s_add_u32 s47, s47, s11")
    A("s_waitcnt lgkmcnt(0)")
    srd(A, 12, 4, L * F * 2)
    srd(A, 16, 6, F * 2)
    srd(A, 20, 8, WS_END)
    A("s_lshl_b32 s48, s46, 18")
    A(f"s_add_u32 s48, s48, {WS_HT}")
    A("s_lshl_b32 s49, s47, 7")
    gemm_body(A, "g1", L, F * 2, 256, 20, 12, 48, 49)
    A("s_mov_b32 s50, 0xffff0000")
    A("v_lshlrev_b32 v13, 5, v12")
    A("v_add_u32 v13, s49, v13")
    A("buffer_load_dwordx4 v[32:35], v13, s[16:19], 0 offen")
    A("buffer_load_dwordx4 v[36:39], v13, s[16:19], 0 offen offset:16")
    for e in range(0, 16, 2):
        bf16r_pair(A, 16 + e, 17 + e, 40, 50)
    A("s_waitcnt vmcnt(0)")
    c1 = 0.7978845608028654; c3 = 0.044715
    A(f"s_mov_b32 s51, {f32bits(-2.0*c1*LOG2E):#x}")
    A(f"s_mov_b32 s52, {f32bits(-2.0*c1*c3*LOG2E):#x}")
    for e in range(0, 16, 2):
        bb = 32 + e // 2
        A(f"v_lshlrev_b32 v40, 16, v{bb}")
        A(f"v_and_b32 v41, s50, v{bb}")
        A(f"v_add_f32 v{16+e}, v{16+e}, v40")
        A(f"v_add_f32 v{17+e}, v{17+e}, v41")
        bf16r_pair(A, 16 + e, 17 + e, 40, 50)
        for t, x in ((42, 16 + e), (43, 17 + e)):
            A(f"v_mul_f32 v{t}, v{x}, v{x}")
            A(f"v_mul_f32 v44, s52, v{t}")
            A(f"v_add_f32 v44, s51, v44")
            A(f"v_mul_f32 v{t}, v{x}, v44")
            A(f"v_exp_f32 v{t}, v{t}")
        A.nop(1)
        for t in (42, 43):
            A(f"v_add_f32 v{t}, 1.0, v{t}")
            A(f"v_rcp_f32 v{t}, v{t}")
        A.nop(1)
        A(f"v_mul_f32 v42, v{16+e}, v42")
        A(f"v_mul_f32 v43, v{17+e}, v43")
        A(f"v_cvt_pk_bf16_f32 v{48+e//2}, v42, v43")
    A("s_mul_i32 s51, s46, 224")
    A("s_lshl_b32 s52, s47, 3")
    A("s_add_u32 s51, s51, s52")
    A("s_lshl_b32 s51, s51, 10")
    A(f"s_add_u32 s51, s51, {WS_U1}")
    A("v_lshlrev_b32 v13, 11, v12")
    A("v_lshl_add_u32 v13, v11, 4, v13")
    A("buffer_store_dwordx4 v[48:51], v13, s[20:23], s51 offen")
    A("buffer_store_dwordx4 v[52:55], v13, s[20:23], s51 offen offset:1024")
    A("s_branch k2_done")

    A.label("k2_conv")
    A(f"s_sub_u32 s3, s2, {K2_GEMM}")
    A("s_load_dwordx2 s[4:5], s[0:1], 64")
    A("s_lshl_b32 s6, s3, 1")
    A("v_mov_b32 v5, s6")
    A("s_waitcnt lgkmcnt(0)")
    srd(A, 20, 8, WS_END)
    A("global_load_ushort v6, v5, s[4:5]")
    A("s_lshl_b32 s6, s3, 12")
    A(f"s_add_u32 s6, s6, {WS_UT}")
    A(f"s_mul_i32 s7, s3, {RROW*2}")
    A(f"s_add_u32 s10, s7, {WS_RH}")
    A(f"s_add_u32 s11, s7, {WS_RL}")
    A("v_lshlrev_b32 v1, 4, v0")
    A("s_sub_u32 s24, s6, 32")
    A("buffer_load_dwordx4 v[8:11], v1, s[20:23], s24 offen")
    A("buffer_load_dwordx4 v[12:15], v1, s[20:23], s24 offen offset:16")
    A("buffer_load_dwordx4 v[16:19], v1, s[20:23], s24 offen offset:32")
    A("v_add_u32 v2, 4096, v1")
    A("buffer_load_dwordx4 v[20:23], v2, s[20:23], s24 offen")
    A("buffer_load_dwordx4 v[24:27], v2, s[20:23], s24 offen offset:16")
    A("buffer_load_dwordx4 v[28:31], v1, s[20:23], s10 offen")
    A("buffer_load_dwordx4 v[32:35], v1, s[20:23], s11 offen")
    A("buffer_load_dwordx4 v[36:39], v2, s[20:23], s10 offen")
    A("buffer_load_dwordx4 v[40:43], v2, s[20:23], s11 offen")
    A("s_waitcnt vmcnt(0)")
    A("v_cmp_le_u32 vcc, 2, v0")
    A.nop(2)
    for r in range(4):
        A(f"v_cndmask_b32 v{8+r}, 0, v{8+r}, vcc")
    A("v_cmp_le_u32 vcc, 1, v0")
    A.nop(2)
    for r in range(4):
        A(f"v_cndmask_b32 v{12+r}, 0, v{12+r}, vcc")
    def copies(src, vaddr):
        for s in range(8):
            t = s >> 1
            if s & 1 == 0:
                if (src + t) % 2 == 0:
                    A(f"ds_write_b128 v{vaddr}, {vr(src+t,4)} offset:{s*UC}")
                else:
                    for r in range(4):
                        A(f"v_mov_b32 v{44+r}, v{src+t+r}")
                    A(f"ds_write_b128 v{vaddr}, v[44:47] offset:{s*UC}")
                    A.nop(2)
            else:
                for r in range(4):
                    A(f"v_alignbit_b32 v{48+r}, v{src+t+r+1}, v{src+t+r}, 16")
                A(f"ds_write_b128 v{vaddr}, v[48:51] offset:{s*UC}")
                A.nop(2)
    copies(8, 1)
    A(f"ds_write_b128 v1, v[28:31] offset:{LDS_R}")
    A(f"ds_write_b128 v1, v[32:35] offset:{LDS_R+4608}")
    A("v_cmp_gt_u32 vcc, 32, v0")
    A("s_and_saveexec_b64 s[26:27], vcc")
    A("s_cbranch_execz k2_c1")
    A(f"ds_write_b128 v2, v[36:39] offset:{LDS_R}")
    A(f"ds_write_b128 v2, v[40:43] offset:{LDS_R+4608}")
    A("v_cmp_gt_u32 vcc, 2, v0")
    A("s_and_b64 exec, exec, vcc")
    copies(20, 2)
    A.label("k2_c1")
    A("s_mov_b64 exec, s[26:27]")
    A("v_and_b32 v1, 15, v0")
    A("v_bfe_u32 v2, v0, 4, 2")
    A("v_lshrrev_b32 v3, 6, v0")
    A("v_add_u32 v4, 1, v1")
    A("v_and_b32 v7, 7, v4")
    A("v_lshrrev_b32 v4, 3, v4")
    A("v_add_u32 v4, v4, v2")
    A("v_lshlrev_b32 v4, 4, v4")
    A(f"v_mad_u32_u24 v4, v7, s7, v4" if False else f"v_mul_u32_u24 v7, {UC}, v7")
    A("v_add_u32 v4, v4, v7")
    A("v_lshl_add_u32 v4, v3, 7, v4")
    A("v_lshlrev_b32 v7, 5, v1")
    A(f"v_sub_u32 v7, {(2032 - 256*7)*2 + LDS_R}, v7")
    A("v_lshl_add_u32 v7, v2, 4, v7")
    A("v_lshl_add_u32 v7, v3, 7, v7")
    CA = 64
    for i in range(32):
        A(f"v_mov_b32 v{CA+i}, 0")
    A("s_waitcnt lgkmcnt(0)")
    A("s_barrier")
    FA = 96; FH = 128; FL = 160
    for rr in range(2):
        for q in range(8):
            A(f"ds_read_b128 {vr(FA+4*q,4)}, v4 offset:{(32*q + 4*rr)*16}")
        for m in range(8):
            A(f"ds_read_b128 {vr(FH+4*m,4)}, v7 offset:{(7-m)*512 + rr*64}")
        for m in range(8):
            A(f"ds_read_b128 {vr(FL+4*m,4)}, v7 offset:{(7-m)*512 + rr*64 + 4608}")
        A("s_waitcnt lgkmcnt(0)")
        for q in range(8):
            for m in range(8 - q):
                c = q + m
                A(f"v_mfma_f32_16x16x32_bf16 {vr(CA+4*c,4)}, {vr(FA+4*q,4)}, {vr(FH+4*m,4)}, {vr(CA+4*c,4)}")
            for m in range(8 - q):
                c = q + m
                A(f"v_mfma_f32_16x16x32_bf16 {vr(CA+4*c,4)}, {vr(FA+4*q,4)}, {vr(FL+4*m,4)}, {vr(CA+4*c,4)}")
    A.nop(10)
    A("s_barrier")
    A("v_lshlrev_b32 v4, 6, v1")
    A("v_lshl_add_u32 v4, v2, 4, v4")
    A("v_lshl_add_u32 v4, v3, 13, v4")
    for c in range(8):
        A(f"ds_write_b128 v4, {vr(CA+4*c,4)} offset:{c*1024}")
    A("s_waitcnt lgkmcnt(0)")
    A("s_barrier")
    A("v_lshlrev_b32 v4, 5, v0")
    for w in range(4):
        A(f"ds_read_b128 {vr(64+8*w,4)}, v4 offset:{w*8192}")
        A(f"ds_read_b128 {vr(68+8*w,4)}, v4 offset:{w*8192+16}")
    A("s_mov_b32 s50, 0xffff0000")
    A("v_lshlrev_b32 v6, 16, v6")
    A("s_waitcnt lgkmcnt(0)")
    for e in range(8):
        A(f"v_add_f32 v{64+e}, v{64+e}, v{72+e}")
        A(f"v_add_f32 v{80+e}, v{80+e}, v{88+e}")
        A(f"v_add_f32 v{64+e}, v{64+e}, v{80+e}")
    for e in range(0, 8, 2):
        bf16r_pair(A, 64 + e, 65 + e, 40, 50)
        A(f"v_lshlrev_b32 v41, 16, v{16+e//2}")
        A(f"v_and_b32 v42, s50, v{16+e//2}")
        A("v_mul_f32 v41, v41, v6")
        A("v_mul_f32 v42, v42, v6")
        bf16r_pair(A, 41, 42, 40, 50)
        A(f"v_add_f32 v41, v41, v{64+e}")
        A(f"v_add_f32 v42, v42, v{65+e}")
        A(f"v_cvt_pk_bf16_f32 v{44+e//2}, v41, v42")
    A("s_lshl_b32 s6, s3, 12")
    A(f"s_add_u32 s6, s6, {WS_AT}")
    A("v_lshlrev_b32 v1, 4, v0")
    A("buffer_store_dwordx4 v[44:47], v1, s[20:23], s6 offen")
    A.label("k2_done")
    A("s_endpgm")

K3_GRID = 256
K3_LDS = 4 * WREG

def gen_k3(A):
    A.raw(".p2align 8")
    A.label("k3_kernel")
    A(f"s_cmp_ge_u32 s2, {K3_GRID}")
    A("s_cbranch_scc1 k3_done")
    A("s_load_dwordx2 s[8:9], s[0:1], 136")
    A("s_load_dwordx4 s[4:7], s[0:1], 96")
    A("s_load_dwordx2 s[28:29], s[0:1], 120")
    A("s_and_b32 s3, s2, 7")
    A("s_lshr_b32 s10, s2, 3")
    A("s_and_b32 s11, s3, 1")
    A("s_lshl_b32 s11, s11, 2")
    A("s_and_b32 s46, s10, 3")
    A("s_add_u32 s46, s46, s11")
    A("s_lshr_b32 s11, s3, 1")
    A("s_lshl_b32 s11, s11, 3")
    A("s_lshr_b32 s47, s10, 2")
    A("s_add_u32 s47, s47, s11")
    A("s_waitcnt lgkmcnt(0)")
    srd(A, 12, 4, F * L * 2)
    srd(A, 16, 6, L * 2)
    srd(A, 20, 8, WS_END)
    srd(A, 24, 28, L * D * 2)
    A("s_mul_i32 s48, s46, 229376")
    A(f"s_add_u32 s48, s48, {WS_U1}")
    A("s_lshl_b32 s49, s47, 7")
    gemm_body(A, "g2", F, L * 2, 224, 20, 12, 48, 49)
    A("s_mov_b32 s50, 0xffff0000")
    A("v_lshlrev_b32 v13, 5, v12")
    A("v_add_u32 v13, s49, v13")
    A("buffer_load_dwordx4 v[32:35], v13, s[16:19], 0 offen")
    A("buffer_load_dwordx4 v[36:39], v13, s[16:19], 0 offen offset:16")
    A("s_lshl_b32 s51, s46, 18")
    A(f"s_add_u32 s51, s51, {WS_AT}")
    A("v_lshl_add_u32 v14, v11, 12, v13")
    A("buffer_load_dwordx4 v[40:43], v14, s[20:23], s51 offen")
    A("buffer_load_dwordx4 v[44:47], v14, s[20:23], s51 offen offset:16")
    A(f"s_mov_b32 s51, {WS_G}")
    A("v_lshlrev_b32 v14, 1, v13")
    for k in range(4):
        A(f"buffer_load_dwordx4 {vr(48+4*k,4)}, v14, s[20:23], s51 offen offset:{16*k}")
    for e in range(0, 16, 2):
        bf16r_pair(A, 16 + e, 17 + e, 64, 50)
    A("s_waitcnt vmcnt(0)")
    for e in range(0, 16, 2):
        bb = 32 + e // 2; aa = 40 + e // 2
        A(f"v_lshlrev_b32 v64, 16, v{bb}")
        A(f"v_and_b32 v65, s50, v{bb}")
        A(f"v_add_f32 v{16+e}, v{16+e}, v64")
        A(f"v_add_f32 v{17+e}, v{17+e}, v65")
        bf16r_pair(A, 16 + e, 17 + e, 64, 50)
        A(f"v_lshlrev_b32 v66, 16, v{aa}")
        A(f"v_and_b32 v67, s50, v{aa}")
        A(f"v_mul_f32 v66, v{48+e}, v66")
        A(f"v_mul_f32 v67, v{49+e}, v67")
        bf16r_pair(A, 66, 67, 64, 50)
        A(f"v_sub_f32 v68, 1.0, v{48+e}")
        A(f"v_sub_f32 v69, 1.0, v{49+e}")
        bf16r_pair(A, 68, 69, 64, 50)
        A(f"v_mul_f32 v68, v68, v{16+e}")
        A(f"v_mul_f32 v69, v69, v{17+e}")
        bf16r_pair(A, 68, 69, 64, 50)
        A("v_add_f32 v66, v66, v68")
        A("v_add_f32 v67, v67, v69")
        A(f"v_cvt_pk_bf16_f32 v{72+e//2}, v66, v67")
    A("s_barrier")
    OS = 144
    A(f"v_mul_u32_u24 v13, {OS}, v11")
    A("v_lshl_add_u32 v13, v12, 5, v13")
    A("ds_write_b128 v13, v[72:75]")
    A("ds_write_b128 v13, v[76:79] offset:16")
    A("v_lshrrev_b32 v2, 6, v0")
    A("v_bfe_u32 v3, v0, 4, 2")
    A("v_and_b32 v4, 15, v0")
    A("v_lshrrev_b32 v5, 2, v4")
    A("v_and_b32 v6, 3, v0")
    A("v_lshl_add_u32 v7, v3, 3, v5")
    A(f"v_mul_u32_u24 v7, {OS}, v7")
    A("v_lshl_add_u32 v7, v2, 5, v7")
    A("v_lshl_add_u32 v7, v6, 3, v7")
    A("v_lshl_add_u32 v8, v2, 4, v4")
    A("v_lshlrev_b32 v8, 10, v8")
    A("v_lshl_add_u32 v8, v3, 4, v8")
    A("s_lshl_b32 s51, s47, 16")
    A("s_lshl_b32 s52, s46, 7")
    A("s_add_u32 s51, s51, s52")
    A("s_waitcnt lgkmcnt(0)")
    A("s_barrier")
    for it in range(2):
        A(f"ds_read_b64_tr_b16 {vr(16+4*it,2)}, v7 offset:{it*32*OS}")
        A(f"ds_read_b64_tr_b16 {vr(18+4*it,2)}, v7 offset:{it*32*OS + 4*OS}")
    A("s_waitcnt lgkmcnt(2)")
    A("buffer_store_dwordx4 v[16:19], v8, s[24:27], s51 offen")
    A("s_waitcnt lgkmcnt(0)")
    A("buffer_store_dwordx4 v[20:23], v8, s[24:27], s51 offen offset:64")
    A.label("k3_done")
    A("s_endpgm")

def descriptor(name, vgpr, sgpr=64):
    acc = (vgpr + 3) // 4 * 4
    return f""".amdhsa_kernel {name}
  .amdhsa_next_free_vgpr {vgpr}
  .amdhsa_next_free_sgpr {sgpr}
  .amdhsa_accum_offset {acc}
  .amdhsa_group_segment_fixed_size 0
  .amdhsa_kernarg_size 144
  .amdhsa_user_sgpr_count 2
  .amdhsa_user_sgpr_kernarg_segment_ptr 1
  .amdhsa_system_sgpr_workgroup_id_x 1
.end_amdhsa_kernel
"""

def main(out):
    ref = open(f"cdna_kernels/{NAME}.s.ref").read().splitlines()
    head = [l for l in ref if l.startswith(";") and "@launch" not in l]
    A = Asm()
    gen_k1(A); gen_k2(A); gen_k3(A)
    txt = "\n".join(head) + "\n"
    txt += f"; @launch kernel=k1_kernel grid=({K1_GRID},1,1) block=(256,1,1) lds={K1_LDS}\n"
    txt += f"; @launch kernel=k2_kernel grid=({K2_GRID},1,1) block=(256,1,1) lds={K2_LDS}\n"
    txt += f"; @launch kernel=k3_kernel grid=({K3_GRID},1,1) block=(256,1,1) lds={K3_LDS}\n"
    txt += '.amdgcn_target "amdgcn-amd-amdhsa--gfx950"\n.text\n'
    for k in ("k1_kernel", "k2_kernel", "k3_kernel"):
        txt += f".globl {k}\n.type {k},@function\n"
    txt += A.text()
    txt += '.section .rodata,"a"\n.p2align 6\n'
    txt += descriptor("k1_kernel", 88) + ".p2align 6\n"
    txt += descriptor("k2_kernel", 192) + ".p2align 6\n"
    txt += descriptor("k3_kernel", 128)
    open(out, "w").write(txt)

if __name__ == "__main__":
    main(sys.argv[1] if len(sys.argv) > 1 else f"cdna_kernels/{NAME}.s")
```

```python
import sys, struct, os

NAME = "gated_mix__ssm_conv_s4__mixer_token_mlp__prompt"

L = 2048; D = 512; N = 128; F = 1792
WS_HT = 0
WS_UT = 2 << 20
WS_G  = 4 << 20
RROW  = 2304
WS_RH = (4 << 20) + 65536
WS_RL = WS_RH + D * RROW * 2
WS_U1 = WS_RL + D * RROW * 2
WS_AT = WS_U1 + D * F * 2
WS_END = WS_AT + D * L * 2
assert WS_U1 % 4096 == 0 and WS_AT % 4096 == 0

def env(k, d):
    return int(os.environ.get(k, str(d)))

def f32bits(x):
    return struct.unpack("<I", struct.pack("<f", x))[0]

class Asm:
    def __init__(self):
        self.lines = []
    def __call__(self, s):
        self.lines.append("    " + s)
    def label(self, l):
        self.lines.append(l + ":")
    def raw(self, s):
        self.lines.append(s)
    def nop(self, n):
        while n > 0:
            k = min(n, 16)
            self(f"s_nop {k-1}")
            n -= k
    def text(self):
        return "\n".join(self.lines) + "\n"

def vr(a, n=1):
    return f"v{a}" if n == 1 else f"v[{a}:{a+n-1}]"

def srd(A, d, base, nbytes):
    A(f"s_mov_b32 s{d}, s{base}")
    A(f"s_and_b32 s{d+1}, s{base+1}, 0xffff")
    A(f"s_mov_b32 s{d+2}, {nbytes}")
    A(f"s_mov_b32 s{d+3}, 0x00020000")

STAMP = os.environ.get("STAMP")
WS_ST = 24 << 20
def stamp(A, k):
    if STAMP:
        A(f"s_memrealtime s[{70+2*k}:{71+2*k}]")
def stamp_flush(A, kid, n):
    if not STAMP: return
    A("s_waitcnt vmcnt(0)")
    stamp(A, n - 1)
    A("s_waitcnt lgkmcnt(0)")
    A("s_mov_b64 exec, -1")
    A("v_lshrrev_b32 v1, 6, v0")
    A("s_lshl_b32 s68, s2, 2")
    A("v_add_u32 v1, s68, v1")
    A("v_lshlrev_b32 v1, 6, v1")
    A(f"s_mov_b32 s68, {WS_ST + kid*(1<<20)}")
    A(f"s_mov_b32 s22, {32<<20}")
    for k in range(n):
        A(f"v_mov_b32 v2, s{70+2*k}")
        A(f"buffer_store_dword v2, v1, s[20:23], s68 offen offset:{4*k}")
        A.nop(2)

LOG2E = 1.4426950408889634
INV2PI = 0.15915494309189535

def bf16r_pair(A, a, b, tmp, smask):
    A(f"v_cvt_pk_bf16_f32 v{tmp}, v{a}, v{b}")
    A(f"v_lshlrev_b32 v{a}, 16, v{tmp}")
    A(f"v_and_b32 v{b}, s{smask}, v{tmp}")

K1_PREP = 128
K1_GRID = K1_PREP + D
LS = 1056
LDS_X = 0
LDS_H = 16 * LS
K1_LDS = 2 * 16 * LS

def gen_k1(A):
    A.raw(".p2align 8")
    A.label("k1_kernel")
    A(f"s_cmp_ge_u32 s2, {K1_GRID}")
    A("s_cbranch_scc1 k1_done")
    stamp(A, 0)
    A("s_load_dwordx2 s[8:9], s[0:1], 136")
    A(f"s_cmp_ge_u32 s2, {K1_PREP}")
    A("s_cbranch_scc1 k1_kgen")
    A("s_load_dwordx2 s[4:5], s[0:1], 0")
    A("s_load_dwordx2 s[6:7], s[0:1], 112")
    A("v_lshrrev_b32 v1, 4, v0")
    A("v_and_b32 v2, 15, v0")
    A("s_lshl_b32 s3, s2, 4")
    A("v_add_u32 v3, s3, v1")
    A("v_lshlrev_b32 v3, 10, v3")
    A("v_lshl_add_u32 v3, v2, 4, v3")
    A("v_lshlrev_b32 v4, 4, v2")
    A("s_waitcnt lgkmcnt(0)")
    srd(A, 12, 4, L * D * 2)
    srd(A, 16, 6, D * 2)
    srd(A, 20, 8, WS_END)
    X = 8; G = 24
    for j in range(4):
        A(f"buffer_load_dwordx4 {vr(X+4*j,4)}, v3, s[12:15], 0 offen offset:{256*j}")
    for j in range(4):
        A(f"buffer_load_dwordx4 {vr(G+4*j,4)}, v4, s[16:19], 0 offen offset:{256*j}")
    A(f"v_mul_u32_u24 v5, {LS}, v1")
    A("v_lshl_add_u32 v5, v2, 4, v5")
    A("v_mov_b32 v72, 0")
    A("v_mov_b32 v73, 0")
    A("s_mov_b32 s24, 0xffff0000")
    A("s_waitcnt vmcnt(4)")
    stamp(A, 1)
    for j in range(4):
        A(f"ds_write_b128 v5, {vr(X+4*j,4)} offset:{LDS_X+256*j}")
    for i in range(16):
        A(f"v_lshlrev_b32 v{40+2*i}, 16, v{X+i}")
        A(f"v_and_b32 v{41+2*i}, s24, v{X+i}")
    for i in range(0, 32, 2):
        A(f"v_add_f32 v72, v72, v{40+i}")
        A(f"v_add_f32 v73, v73, v{41+i}")
    A("v_add_f32 v72, v72, v73")
    A("v_mov_b32 v73, 0")
    def red16(r):
        for m in ("quad_perm:[1,0,3,2]", "quad_perm:[2,3,0,1]", "row_half_mirror", "row_mirror"):
            A.nop(2)
            A(f"v_add_f32_dpp v78, v{r}, v{r} {m} row_mask:0xf bank_mask:0xf")
            A(f"v_mov_b32 v{r}, v78")
    red16(72)
    A(f"v_mul_f32 v72, {f32bits(1.0/512):#x}, v72")
    A("v_mov_b32 v79, 0")
    A("v_mov_b32 v77, 0")
    for i in range(0, 32, 2):
        A(f"v_sub_f32 v74, v{40+i}, v72")
        A(f"v_sub_f32 v75, v{41+i}, v72")
        A("v_fmac_f32 v79, v74, v74")
        A("v_fmac_f32 v77, v75, v75")
    A("v_add_f32 v79, v79, v77")
    red16(79)
    A(f"v_mul_f32 v79, {f32bits(1.0/512):#x}, v79")
    A("s_waitcnt vmcnt(0)")
    for i in range(16):
        A(f"v_lshlrev_b32 v76, 16, v{G+i}")
        A(f"v_and_b32 v77, s24, v{G+i}")
        A(f"v_mul_f32 v76, v{40+2*i}, v76")
        A(f"v_mul_f32 v77, v{41+2*i}, v77")
        A("v_cvt_pk_bf16_f32 v76, v76, v77")
        A("v_lshlrev_b32 v77, 16, v76")
        A("v_and_b32 v76, s24, v76")
        A("v_add_f32 v73, v73, v77")
        A("v_add_f32 v73, v73, v76")
    red16(73)
    A("v_cvt_pk_bf16_f32 v74, v72, v79")
    A("v_lshlrev_b32 v72, 16, v74")
    A("v_and_b32 v79, s24, v74")
    A(f"v_add_f32 v79, {f32bits(1e-5):#x}, v79")
    A("v_cvt_pk_bf16_f32 v74, v79, v73")
    A("v_lshlrev_b32 v79, 16, v74")
    A("v_and_b32 v73, s24, v74")
    A("v_sqrt_f32 v79, v79")
    A(f"v_mul_f32 v73, {f32bits(-LOG2E):#x}, v73")
    A("v_exp_f32 v73, v73")
    A("v_cvt_pk_bf16_f32 v74, v79, v79")
    A("v_lshlrev_b32 v79, 16, v74")
    A("v_add_f32 v73, 1.0, v73")
    A("v_rcp_f32 v79, v79")
    A("v_rcp_f32 v73, v73")
    A.nop(1)
    A("v_cvt_pk_bf16_f32 v74, v73, v73")
    A("v_lshlrev_b32 v73, 16, v74")
    A("v_add_u32 v6, s3, v1")
    A("v_lshlrev_b32 v6, 2, v6")
    A("v_cmp_eq_u32 vcc, 0, v2")
    A("s_and_saveexec_b64 s[26:27], vcc")
    A(f"s_mov_b32 s25, {WS_G}")
    A("buffer_store_dword v73, v6, s[20:23], s25 offen")
    A("s_mov_b64 exec, s[26:27]")
    for i in range(16):
        A(f"v_sub_f32 v74, v{40+2*i}, v72")
        A(f"v_sub_f32 v75, v{41+2*i}, v72")
        A("v_cvt_pk_bf16_f32 v74, v74, v75")
        A("v_lshlrev_b32 v75, 16, v74")
        A("v_and_b32 v74, s24, v74")
        A("v_mul_f32 v75, v75, v79")
        A("v_mul_f32 v74, v74, v79")
        A(f"v_cvt_pk_bf16_f32 v{G+i}, v75, v74")
    for j in range(4):
        A(f"ds_write_b128 v5, {vr(G+4*j,4)} offset:{LDS_H+256*j}")
    A("v_lshrrev_b32 v1, 6, v0")
    A("v_bfe_u32 v2, v0, 4, 1")
    A("v_bfe_u32 v9, v0, 5, 1")
    A("v_and_b32 v3, 15, v0")
    A("v_lshrrev_b32 v4, 2, v3")
    A("v_and_b32 v5, 3, v0")
    A("v_lshl_add_u32 v6, v2, 3, v4")
    A(f"v_mul_u32_u24 v6, {LS}, v6")
    A("v_lshl_add_u32 v6, v1, 8, v6")
    A("v_lshl_add_u32 v6, v9, 5, v6")
    A("v_lshl_add_u32 v6, v5, 3, v6")
    A("v_lshl_add_u32 v7, v1, 9, v2")
    A("v_lshlrev_b32 v7, 10, v7")
    A("v_lshl_add_u32 v7, v3, 4, v7")
    A("v_lshl_add_u32 v7, v9, 8, v7")
    A("s_lshl_b32 s25, s2, 11")
    A("v_add_u32 v7, s25, v7")
    A("v_lshl_add_u32 v8, v1, 7, v3")
    A("v_lshl_add_u32 v8, v9, 4, v8")
    A("v_lshlrev_b32 v8, 12, v8")
    A("v_lshl_add_u32 v8, v2, 4, v8")
    A("s_lshl_b32 s25, s2, 5")
    A("v_add_u32 v8, s25, v8")
    A("s_waitcnt lgkmcnt(0)")
    stamp(A, 2)
    A("s_barrier")
    stamp(A, 3)
    for it in range(4):
        b = 12 + 8 * it
        A(f"ds_read_b64_tr_b16 {vr(b,2)}, v6 offset:{LDS_H + it*64}")
        A(f"ds_read_b64_tr_b16 {vr(b+2,2)}, v6 offset:{LDS_H + it*64 + 4*LS}")
        A(f"ds_read_b64_tr_b16 {vr(b+4,2)}, v6 offset:{LDS_X + it*64}")
        A(f"ds_read_b64_tr_b16 {vr(b+6,2)}, v6 offset:{LDS_X + it*64 + 4*LS}")
    for it in range(4):
        b = 12 + 8 * it
        A(f"s_mov_b32 s25, {WS_HT + (it>>1)*262144}")
        A(f"s_mov_b32 s28, {WS_UT + it*131072}")
        A(f"s_waitcnt lgkmcnt({4*(3-it)})")
        A(f"buffer_store_dwordx4 {vr(b,4)}, v7, s[20:23], s25 offen offset:{(it&1)*512}")
        A(f"buffer_store_dwordx4 {vr(b+4,4)}, v8, s[20:23], s28 offen")
    stamp_flush(A, 0, 5)
    A("s_branch k1_done")

    A.label("k1_kgen")
    A(f"s_sub_u32 s3, s2, {K1_PREP}")
    A("s_load_dwordx4 s[12:15], s[0:1], 8")
    A("s_load_dwordx4 s[16:19], s[0:1], 24")
    A("s_load_dwordx4 s[24:27], s[0:1], 40")
    A("s_load_dwordx2 s[28:29], s[0:1], 56")
    A("s_load_dwordx2 s[32:33], s[0:1], 80")
    A("v_and_b32 v1, 15, v0")
    A("v_bfe_u32 v2, v0, 4, 2")
    A("v_lshrrev_b32 v3, 6, v0")
    A("v_lshlrev_b32 v4, 6, v3")
    A("v_lshl_add_u32 v4, v2, 4, v4")
    A("s_lshl_b32 s4, s3, 8")
    A("v_add_u32 v4, s4, v4")
    A("s_lshl_b32 s5, s3, 1")
    A("v_mov_b32 v5, s5")
    A("s_waitcnt lgkmcnt(0)")
    srd(A, 20, 8, WS_END)
    srd(A, 36, 32, L * F * 2)
    P = 8
    for k, sb in enumerate((12, 14, 16, 18, 24, 26)):
        A(f"global_load_dwordx4 {vr(P+4*k,4)}, v4, s[{sb}:{sb+1}]")
    A("global_load_ushort v6, v5, s[28:29]")
    A("v_lshlrev_b32 v32, 3, v1")
    A("v_cvt_f32_u32 v32, v32")
    A("v_and_b32 v33, 7, v1")
    A("v_lshrrev_b32 v34, 3, v1")
    A("v_lshl_add_u32 v33, v34, 7, v33")
    A("v_cvt_f32_u32 v33, v33")
    A("v_and_b32 v34, 3, v1")
    A("v_lshlrev_b32 v34, 1, v34")
    A("v_lshrrev_b32 v35, 2, v1")
    A("v_lshl_add_u32 v34, v35, 7, v34")
    A("v_add_u32 v34, 256, v34")
    A("v_and_b32 v35, 1, v1")
    A("v_lshlrev_b32 v35, 2, v35")
    A("v_bfe_u32 v36, v1, 1, 2")
    A("v_lshl_add_u32 v35, v36, 7, v35")
    A("v_add_u32 v35, 512, v35")
    A("v_cmp_gt_u32 vcc, 8, v1")
    A.nop(2)
    A("v_cndmask_b32 v34, v35, v34, vcc")
    A("v_cvt_f32_u32 v34, v34")
    A("v_min_u32 v35, 8, v1")
    A("v_lshlrev_b32 v35, 7, v35")
    A("v_add_u32 v35, 1024, v35")
    A("v_cvt_f32_u32 v35, v35")
    for r in range(12):
        A(f"v_mov_b32 v{40+r}, 0")
    A("s_mov_b32 s30, 0xffff0000")
    A("s_waitcnt vmcnt(0)")
    stamp(A, 1)
    if env("PREF1", 1):
        A("v_lshlrev_b32 v74, 4, v0")
        A("s_lshl_b32 s34, s3, 14")
        for k in range(4):
            A(f"buffer_load_dwordx4 v[76:79], v74, s[36:39], s34 offen offset:0" if k == 0 else
              f"buffer_load_dwordx4 v[76:79], v74, s[36:39], s35 offen")
            A(f"s_add_u32 s35, s34, {4096*(k+1)}")
    A("v_lshlrev_b32 v6, 16, v6")
    A(f"s_mov_b32 s31, {f32bits(LOG2E):#x}")
    A("v_mul_f32 v7, s31, v6")
    A("v_fma_f32 v36, v6, s31, -v7")
    l2e_lo = LOG2E - struct.unpack("<f", struct.pack("<f", LOG2E))[0]
    A(f"v_fmac_f32 v36, {f32bits(l2e_lo):#x}, v6")
    A("v_exp_f32 v7, v7")
    A(f"v_mul_f32 v36, {f32bits(0.6931471805599453):#x}, v36")
    A("v_fma_f32 v7, v7, v36, v7")
    A("v_cvt_pk_bf16_f32 v7, v7, v7")
    A("v_lshlrev_b32 v7, 16, v7")
    A(f"s_mov_b32 s4, {f32bits(INV2PI):#x}")
    for q in range(8):
        def unp(dst, k):
            src = P + 4 * k + (q >> 1)
            if q & 1:
                A(f"v_and_b32 v{dst}, s30, v{src}")
            else:
                A(f"v_lshlrev_b32 v{dst}, 16, v{src}")
        unp(52, 0); unp(53, 1); unp(54, 2); unp(55, 3); unp(56, 4); unp(57, 5)
        A("v_mul_f32 v52, v7, v52")
        A("v_mul_f32 v53, v7, v53")
        A("v_mul_f32 v54, v7, v54")
        A("v_mul_f32 v55, v7, v55")
        A("v_mul_f32 v52, s31, v52")
        A("v_mul_f32 v53, s4, v53")
        A("v_mul_f32 v58, v56, v54")
        A("v_fma_f32 v58, -v57, v55, v58")
        A("v_mul_f32 v59, v56, v55")
        A("v_fmac_f32 v59, v57, v54")
        for e, src in enumerate((32, 33, 34, 35)):
            A(f"v_mul_f32 v{60+e}, v{src}, v52")
            A(f"v_mul_f32 v{64+e}, v{src}, v53")
        for e in range(4):
            A(f"v_exp_f32 v{60+e}, v{60+e}")
            A(f"v_fract_f32 v{64+e}, v{64+e}")
        for e in range(4):
            A(f"v_sin_f32 v{68+e}, v{64+e}")
            A(f"v_cos_f32 v{64+e}, v{64+e}")
        A.nop(1)
        for e in range(4):
            A(f"v_mul_f32 v{68+e}, v{60+e}, v{68+e}")
            A(f"v_mul_f32 v{64+e}, v{60+e}, v{64+e}")
        A("v_mul_f32 v72, v58, v64")
        A("v_fma_f32 v72, -v59, v68, v72")
        A("v_mul_f32 v73, -v58, v68")
        A("v_fma_f32 v73, -v59, v64, v73")
        A.nop(2)
        for b in range(3):
            A(f"v_mfma_f32_16x16x4_f32 {vr(40+4*b,4)}, v{65+b}, v72, {vr(40+4*b,4)}")
        for b in range(3):
            A(f"v_mfma_f32_16x16x4_f32 {vr(40+4*b,4)}, v{69+b}, v73, {vr(40+4*b,4)}")
    A.nop(12)
    stamp(A, 2)
    A("v_mul_u32_u24 v4, 3072, v3")
    A("v_lshl_add_u32 v4, v2, 8, v4")
    A("v_lshl_add_u32 v4, v1, 2, v4")
    for b in range(3):
        for r in range(4):
            A(f"ds_write_b32 v4, v{40+4*b+r} offset:{(16*b + r)*64}")
    A("s_waitcnt lgkmcnt(0)")
    A("s_barrier")
    A("v_lshlrev_b32 v4, 2, v0")
    for e in range(3):
        for w in range(4):
            A(f"ds_read_b32 v{8+4*e+w}, v4 offset:{w*3072 + e*1024}")
    A("s_waitcnt lgkmcnt(0)")
    for e in range(3):
        A(f"v_add_f32 v{8+4*e}, v{8+4*e}, v{9+4*e}")
        A(f"v_add_f32 v{10+4*e}, v{10+4*e}, v{11+4*e}")
        A(f"v_add_f32 v{8+4*e}, v{8+4*e}, v{10+4*e}")
        A(f"ds_write_b32 v4, v{8+4*e} offset:{12288 + e*1024}")
    A("s_waitcnt lgkmcnt(0)")
    A("s_barrier")
    stamp(A, 3)
    A(f"s_mul_i32 s4, s3, {RROW*2}")
    A(f"s_add_u32 s5, s4, {WS_RH}")
    A(f"s_add_u32 s6, s4, {WS_RL}")
    A(f"v_lshlrev_b32 v4, 3, v0")
    A(f"v_sub_u32 v4, 2047, v4")
    for e in range(8):
        A(f"v_subrev_u32 v{16+e}, {e}, v4")
        A(f"v_cvt_f32_u32 v{16+e}, v{16+e}")
    for e in range(0, 8, 2):
        A(f"v_cvt_pk_bf16_f32 v24, v{16+e}, v{17+e}")
        A(f"v_lshlrev_b32 v{16+e}, 16, v24")
        A(f"v_and_b32 v{17+e}, s30, v24")
    for e in range(8):
        A(f"v_cvt_u32_f32 v24, v{16+e}")
        A(f"v_lshrrev_b32 v25, 23, v{16+e}")
        A("v_subrev_u32 v25, 134, v25")
        A("v_med3_i32 v25, v25, 0, 3")
        A("v_lshrrev_b32 v26, 7, v24")
        A("v_and_b32 v27, 7, v24")
        A("v_lshl_or_b32 v26, v26, 3, v27")
        A("v_lshrrev_b32 v26, v25, v26")
        A("v_lshl_add_u32 v26, v25, 3, v26")
        A("v_bfe_u32 v27, v24, 3, 4")
        A("v_lshl_add_u32 v26, v26, 4, v27")
        A("v_lshlrev_b32 v26, 2, v26")
        A(f"ds_read_b32 v{16+e}, v26 offset:12288")
    A("s_waitcnt lgkmcnt(0)")
    for e in range(0, 8, 2):
        A(f"v_cvt_pk_bf16_f32 v{28+e//2}, v{16+e}, v{17+e}")
        A(f"v_lshlrev_b32 v24, 16, v{28+e//2}")
        A(f"v_and_b32 v25, s30, v{28+e//2}")
        A(f"v_sub_f32 v24, v{16+e}, v24")
        A(f"v_sub_f32 v25, v{17+e}, v25")
        A(f"v_cvt_pk_bf16_f32 v{32+e//2}, v24, v25")
    A(f"v_lshlrev_b32 v5, 4, v0")
    A(f"buffer_store_dwordx4 v[28:31], v5, s[20:23], s5 offen")
    A(f"buffer_store_dwordx4 v[32:35], v5, s[20:23], s6 offen")
    A("v_cmp_gt_u32 vcc, 32, v0")
    A("s_and_saveexec_b64 s[26:27], vcc")
    A("s_cbranch_execz k1_exp_end")
    for r in range(4):
        A(f"v_mov_b32 v{36+r}, 0")
    A("v_add_u32 v5, 4096, v5")
    A(f"buffer_store_dwordx4 v[36:39], v5, s[20:23], s5 offen")
    A(f"buffer_store_dwordx4 v[36:39], v5, s[20:23], s6 offen")
    A.label("k1_exp_end")
    stamp_flush(A, 0, 5)
    A.label("k1_done")
    A("s_endpgm")

NST2 = env("NST2", 4)
NST3 = env("NST3", 4)
STB = 4096
ACC = 64

def gemm_setup(A, KTOT, rowB, s_at, s_bt, NST):
    WREG = NST * STB
    KW = KTOT // 4
    A("v_and_b32 v1, 63, v0")
    A("v_lshrrev_b32 v2, 6, v0")
    A.nop(1)
    A("v_readfirstlane_b32 s40, v2")
    A("v_lshlrev_b32 v3, 4, v1")
    A("v_lshrrev_b32 v4, 3, v1")
    A("v_and_b32 v5, 7, v1")
    A("v_lshlrev_b32 v6, 1, v4")
    A("v_and_b32 v6, 4, v6")
    A("v_xor_b32 v5, v5, v6")
    A(f"s_mov_b32 s41, {rowB}")
    A("v_mul_lo_u32 v4, v4, s41")
    A("v_lshl_add_u32 v4, v5, 4, v4")
    A(f"v_add_u32 v5, {8*rowB - 1024}, v4")
    A(f"s_mul_i32 s42, s40, {WREG}")
    A(f"s_mul_i32 s43, s40, {KW//8*1024}")
    A(f"s_add_u32 s43, s43, s{s_at}")
    A(f"s_mul_i32 s44, s40, {KW*rowB}")
    A(f"s_add_u32 s44, s44, s{s_bt}")

def gemm_dma(A, j, NST, sA, sB, rowB):
    slot = (j % NST) * STB
    A(f"s_add_u32 s45, s42, {slot}")
    A("s_mov_b32 m0, s45")
    A(f"s_add_u32 s45, s42, {slot+2048}")
    A(f"buffer_load_dwordx4 v3, s[{sA}:{sA+3}], s43 offen lds")
    A(f"buffer_load_dwordx4 v3, s[{sA}:{sA+3}], s43 offen offset:1024 lds")
    A("s_mov_b32 m0, s45")
    A("s_add_u32 s43, s43, 2048")
    A(f"buffer_load_dwordx4 v4, s[{sB}:{sB+3}], s44 offen lds")
    A(f"buffer_load_dwordx4 v5, s[{sB}:{sB+3}], s44 offen offset:1024 lds")
    A(f"s_add_u32 s44, s44, {16*rowB}")

def gemm_main(A, KTOT, rowB, sA, sB, NST, swap, extra_vm=0):
    KW = KTOT // 4
    NS = KW // 16
    LOOK = NST - 1
    A("s_lshr_b32 s46, s40, 1")
    A("s_and_b32 s47, s40, 1")
    A("v_and_b32 v6, 31, v1")
    A("v_lshrrev_b32 v7, 5, v1")
    A("v_lshlrev_b32 v6, 4, v6")
    A("v_lshl_add_u32 v6, v7, 10, v6")
    A("s_lshl_b32 s45, s46, 9")
    A("s_add_u32 s45, s45, s42")
    A("v_add_u32 v6, s45, v6")
    A("v_xor_b32 v8, 512, v6")
    A("v_bfe_u32 v11, v1, 2, 2")
    A("v_lshl_add_u32 v9, v7, 3, v11")
    A("v_lshlrev_b32 v9, 7, v9")
    A("v_lshrrev_b32 v10, 1, v11")
    A("v_lshl_add_u32 v9, v10, 6, v9")
    A("v_bfe_u32 v10, v1, 4, 1")
    A("v_lshl_add_u32 v9, v10, 5, v9")
    A("v_bfe_u32 v10, v1, 1, 1")
    A("v_lshl_add_u32 v9, v10, 4, v9")
    A("v_and_b32 v10, 1, v1")
    A("v_lshl_add_u32 v9, v10, 3, v9")
    A("s_lshl_b32 s45, s47, 6")
    A("v_xor_b32 v9, s45, v9")
    A("s_add_u32 s45, s42, 2048")
    A("v_add_u32 v9, s45, v9")
    A("v_xor_b32 v10, 64, v9")
    for i in range(64):
        A(f"v_mov_b32 v{ACC+i}, 0")
    FR = 16
    def rd(j):
        slot = (j % NST) * STB
        f = FR + 16 * (j & 1)
        A(f"ds_read_b128 {vr(f,4)}, v6 offset:{slot}")
        A(f"ds_read_b128 {vr(f+4,4)}, v8 offset:{slot}")
        A(f"ds_read_b64_tr_b16 {vr(f+8,2)}, v9 offset:{slot}")
        A(f"ds_read_b64_tr_b16 {vr(f+10,2)}, v9 offset:{slot+512}")
        A(f"ds_read_b64_tr_b16 {vr(f+12,2)}, v10 offset:{slot}")
        A(f"ds_read_b64_tr_b16 {vr(f+14,2)}, v10 offset:{slot+512}")
    stamp(A, 1)
    A(f"s_waitcnt vmcnt({4*(LOOK-1)+extra_vm})")
    stamp(A, 2)
    rd(0)
    for j in range(NS):
        if j + LOOK < NS:
            gemm_dma(A, j + LOOK, NST, sA, sB, rowB)
        if j + 1 < NS:
            last_issued = min(j + LOOK, NS - 1)
            n = 4 * (last_issued - (j + 1))
            if j + 1 < LOOK:
                n += extra_vm
            A(f"s_waitcnt vmcnt({n})")
            rd(j + 1)
            A("s_waitcnt lgkmcnt(6)")
        else:
            A("s_waitcnt lgkmcnt(0)")
        f = FR + 16 * (j & 1)
        for blk in range(2):
            for nb in range(2):
                acc = ACC + 16 * (2 * blk + nb)
                a_, b_ = vr(f + 4 * blk, 4), vr(f + 8 + 4 * nb, 4)
                if swap:
                    A(f"v_mfma_f32_32x32x16_bf16 {vr(acc,16)}, {b_}, {a_}, {vr(acc,16)}")
                else:
                    A(f"v_mfma_f32_32x32x16_bf16 {vr(acc,16)}, {a_}, {b_}, {vr(acc,16)}")
    stamp(A, 3)
    A("v_lshlrev_b32 v15, 4, v1")
    A("s_barrier")
    A.nop(8)
    for a in range(1, 4):
        A(f"s_xor_b32 s45, s40, {a}")
        A("s_mul_i32 s45, s45, 12288")
        A("v_add_u32 v2, s45, v15")
        for g in range(4):
            A(f"ds_write_b128 v2, {vr(ACC+16*a+4*g,4)} offset:{(a-1)*4096 + g*1024}")
    A("s_mul_i32 s45, s40, 12288")
    A("v_add_u32 v2, s45, v15")
    A("s_waitcnt lgkmcnt(0)")
    A("s_barrier")
    for k in range(3):
        for g in range(4):
            A(f"ds_read_b128 {vr(ACC+16+16*k+4*g,4)}, v2 offset:{k*4096 + g*1024}")
    for k in range(3):
        A(f"s_waitcnt lgkmcnt({8-4*k})")
        for e in range(16):
            A(f"v_add_f32 v{ACC+e}, v{ACC+e}, v{ACC+16+16*k+e}")
    stamp(A, 4)

K2_GEMM = 224
K2_CONV = 256
K2_GRID = K2_GEMM + K2_CONV
UC = 4160
CH_LDS = 2 * UC + 2 * 4608
LDS_RED = 2 * CH_LDS
K2_LDS = max(49152, 4 * NST2 * STB, LDS_RED + 16384)

def gen_k2(A):
    A.raw(".p2align 8")
    A.label("k2_kernel")
    A(f"s_cmp_ge_u32 s2, {K2_GRID}")
    A("s_cbranch_scc1 k2_done")
    stamp(A, 0)
    A("s_load_dwordx2 s[8:9], s[0:1], 136")
    A(f"s_cmp_ge_u32 s2, {K2_GEMM}")
    A("s_cbranch_scc1 k2_conv")
    if env("NOGEMM1", 0):
        A("s_branch k2_done")
    A("s_load_dwordx4 s[4:7], s[0:1], 80")
    A("s_and_b32 s3, s2, 7")
    A("s_lshr_b32 s10, s2, 3")
    A("s_and_b32 s11, s3, 1")
    A("s_lshl_b32 s11, s11, 2")
    A("s_and_b32 s54, s10, 3")
    A("s_add_u32 s54, s54, s11")
    A("s_lshr_b32 s11, s3, 1")
    A("s_mul_i32 s11, s11, 7")
    A("s_lshr_b32 s55, s10, 2")
    A("s_add_u32 s55, s55, s11")
    A("s_lshl_b32 s48, s54, 18")
    A(f"s_add_u32 s48, s48, {WS_HT}")
    A("s_lshl_b32 s49, s55, 7")
    gemm_setup(A, L, F * 2, 48, 49, NST2)
    A("s_waitcnt lgkmcnt(0)")
    srd(A, 12, 4, L * F * 2)
    srd(A, 16, 6, F * 2)
    srd(A, 20, 8, WS_END)
    for j in range(NST2 - 1):
        gemm_dma(A, j, NST2, 20, 12, F * 2)
    A("s_and_b32 s45, s40, 1")
    A("s_lshl_b32 s45, s45, 6")
    A("s_add_u32 s45, s45, s49")
    A("v_lshrrev_b32 v12, 5, v1")
    A("v_lshlrev_b32 v12, 3, v12")
    for g in range(4):
        A(f"buffer_load_dwordx2 {vr(48+2*g,2)}, v12, s[16:19], s45 offen offset:{16*g}")
    gemm_main(A, L, F * 2, 20, 12, NST2, True, extra_vm=4)
    A("s_mov_b32 s50, 0xffff0000")
    c1 = 0.7978845608028654; c3 = 0.044715
    A(f"s_mov_b32 s51, {f32bits(-2.0*c1*LOG2E):#x}")
    A(f"s_mov_b32 s52, {f32bits(-2.0*c1*c3*LOG2E):#x}")
    for e in range(0, 16, 2):
        x0 = ACC + e; x1 = x0 + 1
        bb = 48 + e // 2
        bf16r_pair(A, x0, x1, 40, 50)
        A(f"v_lshlrev_b32 v40, 16, v{bb}")
        A(f"v_and_b32 v41, s50, v{bb}")
        A(f"v_add_f32 v{x0}, v{x0}, v40")
        A(f"v_add_f32 v{x1}, v{x1}, v41")
        bf16r_pair(A, x0, x1, 40, 50)
        for t, x in ((42, x0), (43, x1)):
            A(f"v_mul_f32 v{t}, v{x}, v{x}")
            A(f"v_mul_f32 v44, s52, v{t}")
            A(f"v_add_f32 v44, s51, v44")
            A(f"v_mul_f32 v{t}, v{x}, v44")
            A(f"v_exp_f32 v{t}, v{t}")
        A.nop(1)
        for t in (42, 43):
            A(f"v_add_f32 v{t}, 1.0, v{t}")
            A(f"v_rcp_f32 v{t}, v{t}")
        A.nop(1)
        A(f"v_mul_f32 v42, v{x0}, v42")
        A(f"v_mul_f32 v43, v{x1}, v43")
        A(f"v_cvt_pk_bf16_f32 v{56+e//2}, v42, v43")
    A("s_mul_i32 s51, s54, 224")
    A("s_lshl_b32 s52, s55, 3")
    A("s_add_u32 s51, s51, s52")
    A("s_lshl_b32 s52, s47, 2")
    A("s_add_u32 s51, s51, s52")
    A("s_lshl_b32 s51, s51, 10")
    A("s_lshl_b32 s52, s46, 9")
    A("s_add_u32 s51, s51, s52")
    A(f"s_add_u32 s51, s51, {WS_U1}")
    A("v_and_b32 v13, 31, v1")
    A("v_lshl_add_u32 v13, v13, 4, v12")
    for g in range(4):
        A(f"buffer_store_dwordx2 {vr(56+2*g,2)}, v13, s[20:23], s51 offen offset:{1024*g}")
    stamp_flush(A, 1, 6)
    A("s_branch k2_done")

    A.label("k2_conv")
    if env("NOCONV", 0):
        A("s_branch k2_done")
    A(f"s_sub_u32 s3, s2, {K2_GEMM}")
    A("s_load_dwordx2 s[4:5], s[0:1], 64")
    A("s_load_dwordx2 s[32:33], s[0:1], 96")
    A("v_lshrrev_b32 v3, 7, v0")
    A("v_and_b32 v9, 127, v0")
    A("s_lshl_b32 s6, s3, 1")
    A("v_add_u32 v5, s6, v3")
    A("v_lshlrev_b32 v6, 1, v5")
    A(f"v_mul_u32_u24 v10, {CH_LDS}, v3")
    A("v_lshl_add_u32 v11, v9, 4, v10")
    A("v_lshlrev_b32 v1, 12, v5")
    A("v_lshl_add_u32 v1, v9, 4, v1")
    A(f"v_mul_u32_u24 v2, {RROW*2}, v5")
    A("v_lshl_add_u32 v2, v9, 4, v2")
    A("s_waitcnt lgkmcnt(0)")
    srd(A, 20, 8, WS_END)
    srd(A, 36, 32, L * F * 2)
    A("global_load_ushort v6, v6, s[4:5]")
    A(f"s_mov_b32 s24, {WS_UT - 32}")
    A(f"s_mov_b32 s10, {WS_RH}")
    A(f"s_mov_b32 s11, {WS_RL}")
    for p in range(3):
        A(f"buffer_load_dwordx4 {vr(16+8*p,4)}, v1, s[20:23], s24 offen offset:{2048*p if p < 2 else 0}" if p < 2 else
          "v_add_u32 v12, 4096, v1")
        if p == 2:
            A(f"buffer_load_dwordx4 {vr(16+8*p,4)}, v12, s[20:23], s24 offen")
            A(f"buffer_load_dword v{20+8*p}, v12, s[20:23], s24 offen offset:16")
        else:
            A(f"buffer_load_dword v{20+8*p}, v1, s[20:23], s24 offen offset:{2048*p+16}")
    for p in range(3):
        if p < 2:
            A(f"buffer_load_dwordx4 {vr(40+8*p,4)}, v2, s[20:23], s10 offen offset:{2048*p}")
            A(f"buffer_load_dwordx4 {vr(44+8*p,4)}, v2, s[20:23], s11 offen offset:{2048*p}")
        else:
            A("v_add_u32 v13, 4096, v2")
            A(f"buffer_load_dwordx4 {vr(40+8*p,4)}, v13, s[20:23], s10 offen")
            A(f"buffer_load_dwordx4 {vr(44+8*p,4)}, v13, s[20:23], s11 offen")
    A("v_cmp_le_u32 vcc, 2, v9")
    A("v_cmp_le_u32 s[26:27], 1, v9")
    A("s_waitcnt vmcnt(6)")
    stamp(A, 1)
    for r in range(4):
        A(f"v_cndmask_b32 v{16+r}, 0, v{16+r}, vcc")
    A("v_cndmask_b32 v20, 0, v20, s[26:27]")
    def ucopy(p):
        b = 16 + 8 * p
        A(f"ds_write_b128 v11, {vr(b,4)} offset:{2048*p}")
        for r in range(4):
            A(f"v_alignbit_b32 v{64+4*p+r}, v{b+r+1}, v{b+r}, 16")
        A(f"ds_write_b128 v11, {vr(64+4*p,4)} offset:{UC + 2048*p}")
    ucopy(0); ucopy(1)
    A("s_waitcnt vmcnt(0)")
    for p in range(2):
        A(f"ds_write_b128 v11, {vr(40+8*p,4)} offset:{2*UC + 2048*p}")
        A(f"ds_write_b128 v11, {vr(44+8*p,4)} offset:{2*UC + 4608 + 2048*p}")
    A("v_cmp_gt_u32 vcc, 32, v9")
    A("s_and_saveexec_b64 s[26:27], vcc")
    A(f"ds_write_b128 v11, {vr(56,4)} offset:{2*UC + 4096}")
    A(f"ds_write_b128 v11, {vr(60,4)} offset:{2*UC + 4608 + 4096}")
    A("v_cmp_gt_u32 vcc, 2, v9")
    A("s_and_b64 exec, exec, vcc")
    ucopy(2)
    A("s_mov_b64 exec, s[26:27]")
    if env("PREF2", 1):
        A("v_lshlrev_b32 v12, 4, v0")
        A("s_mul_i32 s34, s3, 28672")
        for k in range(7):
            A(f"buffer_load_dwordx4 v[240:243], v12, s[36:39], s34 offen")
            A(f"s_add_u32 s34, s34, 4096")
    A("v_and_b32 v1, 15, v0")
    A("v_bfe_u32 v2, v0, 4, 2")
    A("v_bfe_u32 v3, v0, 6, 1")
    A("v_add_u32 v4, 1, v1")
    A("v_and_b32 v7, 1, v4")
    A(f"v_mul_u32_u24 v7, {UC}, v7")
    A("v_lshrrev_b32 v4, 1, v4")
    A("v_lshl_add_u32 v4, v2, 2, v4")
    A("v_lshl_add_u32 v4, v3, 6, v4")
    A("v_lshl_add_u32 v4, v4, 2, v7")
    A("v_add_u32 v4, v4, v10")
    A("v_add_u32 v12, 1024, v4")
    A("v_add_u32 v13, 2048, v4")
    A("v_add_u32 v14, 3072, v4")
    A("v_lshlrev_b32 v7, 5, v1")
    A(f"v_sub_u32 v7, {(2032 - 256*7)*2 + 2*UC}, v7")
    A("v_lshl_add_u32 v7, v2, 4, v7")
    A("v_lshl_add_u32 v7, v3, 8, v7")
    A("v_add_u32 v7, v7, v10")
    CA = 16
    for i in range(32):
        A(f"v_mov_b32 v{CA+i}, 0")
    A("s_waitcnt lgkmcnt(0)")
    A("s_barrier")
    stamp(A, 2)
    abase = (4, 12, 13, 14)
    def loads(rr):
        s = 48 + 96 * (rr & 1)
        for q in range(8):
            o = (q & 1) * 128 + 16 * rr
            A(f"ds_read2_b32 {vr(s+4*q,2)}, v{abase[q>>1]} offset0:{o} offset1:{o+1}")
            A(f"ds_read2_b32 {vr(s+4*q+2,2)}, v{abase[q>>1]} offset0:{o+2} offset1:{o+3}")
        for m in range(8):
            A(f"ds_read_b128 {vr(s+32+4*m,4)}, v7 offset:{(7-m)*512 + rr*64}")
        for m in range(8):
            A(f"ds_read_b128 {vr(s+64+4*m,4)}, v7 offset:{(7-m)*512 + rr*64 + 4608}")
    loads(0)
    for rr in range(4):
        A("s_waitcnt lgkmcnt(0)")
        if rr < 3:
            loads(rr + 1)
        s = 48 + 96 * (rr & 1)
        for q in range(8):
            for m in range(8 - q):
                c = q + m
                A(f"v_mfma_f32_16x16x32_bf16 {vr(CA+4*c,4)}, {vr(s+4*q,4)}, {vr(s+32+4*m,4)}, {vr(CA+4*c,4)}")
            for m in range(8 - q):
                c = q + m
                A(f"v_mfma_f32_16x16x32_bf16 {vr(CA+4*c,4)}, {vr(s+4*q,4)}, {vr(s+64+4*m,4)}, {vr(CA+4*c,4)}")
    stamp(A, 3)
    A("v_and_b32 v8, 63, v0")
    A("v_lshrrev_b32 v9, 6, v0")
    A("v_lshlrev_b32 v8, 4, v8")
    A("v_lshl_add_u32 v11, v9, 12, v8")
    A("v_xor_b32 v12, 4096, v11")
    A("v_cmp_eq_u32 vcc, 0, v3")
    A.nop(6)
    for i in range(16):
        A(f"v_cndmask_b32 v{48+i}, v{CA+16+i}, v{CA+i}, vcc")
        A(f"v_cndmask_b32 v{64+i}, v{CA+i}, v{CA+16+i}, vcc")
    for c in range(4):
        A(f"ds_write_b128 v11, {vr(64+4*c,4)} offset:{LDS_RED + 1024*c}")
    A("v_lshlrev_b32 v13, 5, v1")
    A("v_lshl_add_u32 v13, v2, 3, v13")
    A("v_lshl_add_u32 v13, v3, 11, v13")
    A("v_add_u32 v14, v13, v10")
    for c in range(4):
        A(f"ds_read_b64 {vr(96+2*c,2)}, v14 offset:{32 + 512*c}")
    A("s_waitcnt lgkmcnt(0)")
    A("s_barrier")
    stamp(A, 4)
    for c in range(4):
        A(f"ds_read_b128 {vr(64+4*c,4)}, v12 offset:{LDS_RED + 1024*c}")
    A("s_mov_b32 s50, 0xffff0000")
    A("v_lshlrev_b32 v6, 16, v6")
    A("v_lshl_add_u32 v13, v5, 12, v13")
    A(f"s_mov_b32 s6, {WS_AT}")
    A("s_waitcnt lgkmcnt(0)")
    for c in range(4):
        for e in range(4):
            A(f"v_add_f32 v{48+4*c+e}, v{48+4*c+e}, v{64+4*c+e}")
        for e in range(0, 4, 2):
            x0 = 48 + 4 * c + e
            bf16r_pair(A, x0, x0 + 1, 80, 50)
            us = 96 + 2 * c + e // 2
            A(f"v_lshlrev_b32 v81, 16, v{us}")
            A(f"v_and_b32 v82, s50, v{us}")
            A("v_mul_f32 v81, v81, v6")
            A("v_mul_f32 v82, v82, v6")
            bf16r_pair(A, 81, 82, 80, 50)
            A(f"v_add_f32 v81, v81, v{x0}")
            A(f"v_add_f32 v82, v82, v{x0+1}")
            A(f"v_cvt_pk_bf16_f32 v{84+2*c+e//2}, v81, v82")
        A(f"buffer_store_dwordx2 {vr(84+2*c,2)}, v13, s[20:23], s6 offen offset:{512*c}")
    stamp_flush(A, 1, 6)
    A.label("k2_done")
    A("s_endpgm")

K3_GRID = 256
K3_LDS = max(49152, 4 * NST3 * STB)

def gen_k3(A):
    A.raw(".p2align 8")
    A.label("k3_kernel")
    A(f"s_cmp_ge_u32 s2, {K3_GRID}")
    A("s_cbranch_scc1 k3_done")
    stamp(A, 0)
    A("s_load_dwordx2 s[8:9], s[0:1], 136")
    A("s_load_dwordx4 s[4:7], s[0:1], 96")
    A("s_load_dwordx2 s[28:29], s[0:1], 120")
    A("s_and_b32 s3, s2, 7")
    A("s_lshr_b32 s10, s2, 3")
    A("s_and_b32 s11, s3, 1")
    A("s_lshl_b32 s11, s11, 2")
    A("s_and_b32 s54, s10, 3")
    A("s_add_u32 s54, s54, s11")
    A("s_lshr_b32 s11, s3, 1")
    A("s_lshl_b32 s11, s11, 3")
    A("s_lshr_b32 s55, s10, 2")
    A("s_add_u32 s55, s55, s11")
    A("s_mul_i32 s48, s54, 229376")
    A(f"s_add_u32 s48, s48, {WS_U1}")
    A("s_lshl_b32 s49, s55, 7")
    gemm_setup(A, F, L * 2, 48, 49, NST3)
    A("s_waitcnt lgkmcnt(0)")
    srd(A, 12, 4, F * L * 2)
    srd(A, 16, 6, L * 2)
    srd(A, 20, 8, WS_END)
    srd(A, 24, 28, L * D * 2)
    for j in range(NST3 - 1):
        gemm_dma(A, j, NST3, 20, 12, L * 2)
    A("s_and_b32 s45, s40, 1")
    A("s_lshl_b32 s45, s45, 6")
    A("s_add_u32 s45, s45, s49")
    A("v_and_b32 v12, 31, v1")
    A("v_lshlrev_b32 v13, 1, v12")
    A("buffer_load_ushort v48, v13, s[16:19], s45 offen")
    A("s_lshl_b32 s51, s45, 1")
    A(f"s_add_u32 s51, s51, {WS_G}")
    A("v_lshlrev_b32 v14, 2, v12")
    A("buffer_load_dword v49, v14, s[20:23], s51 offen")
    A("v_lshrrev_b32 v14, 5, v1")
    A("v_lshl_add_u32 v13, v14, 14, v13")
    A("s_lshr_b32 s51, s40, 1")
    A("s_lshl_b32 s51, s51, 5")
    A("s_lshl_b32 s52, s54, 6")
    A("s_add_u32 s51, s51, s52")
    A("s_lshl_b32 s51, s51, 12")
    A("s_add_u32 s51, s51, s45")
    A(f"s_add_u32 s51, s51, {WS_AT}")
    for g in range(4):
        for e in range(4):
            A(f"buffer_load_ushort v{128+4*g+e}, v13, s[20:23], s51 offen")
            A(f"s_add_u32 s51, s51, {4096 if e < 3 else 5*4096}")
    gemm_main(A, F, L * 2, 20, 12, NST3, False, extra_vm=18)
    A("s_mov_b32 s50, 0xffff0000")
    A("v_lshlrev_b32 v48, 16, v48")
    A("v_sub_f32 v50, 1.0, v49")
    A("v_cvt_pk_bf16_f32 v50, v50, v50")
    A("v_lshlrev_b32 v50, 16, v50")
    for e in range(0, 16, 2):
        x0 = ACC + e; x1 = x0 + 1
        bf16r_pair(A, x0, x1, 40, 50)
        A(f"v_add_f32 v{x0}, v{x0}, v48")
        A(f"v_add_f32 v{x1}, v{x1}, v48")
        bf16r_pair(A, x0, x1, 40, 50)
        A(f"v_lshlrev_b32 v41, 16, v{128+e}")
        A(f"v_lshlrev_b32 v42, 16, v{129+e}")
        A("v_mul_f32 v41, v49, v41")
        A("v_mul_f32 v42, v49, v42")
        bf16r_pair(A, 41, 42, 40, 50)
        A(f"v_mul_f32 v{x0}, v50, v{x0}")
        A(f"v_mul_f32 v{x1}, v50, v{x1}")
        bf16r_pair(A, x0, x1, 40, 50)
        A(f"v_add_f32 v41, v41, v{x0}")
        A(f"v_add_f32 v42, v42, v{x1}")
        A(f"v_cvt_pk_bf16_f32 v{56+e//2}, v41, v42")
    A("s_lshl_b32 s51, s55, 16")
    A("s_lshl_b32 s52, s47, 15")
    A("s_add_u32 s51, s51, s52")
    A("s_lshl_b32 s52, s54, 7")
    A("s_add_u32 s51, s51, s52")
    A("s_lshl_b32 s52, s46, 6")
    A("s_add_u32 s51, s51, s52")
    A("v_lshlrev_b32 v13, 10, v12")
    A("v_lshl_add_u32 v13, v14, 3, v13")
    for g in range(4):
        A(f"buffer_store_dwordx2 {vr(56+2*g,2)}, v13, s[24:27], s51 offen offset:{16*g}")
    stamp_flush(A, 2, 6)
    A.label("k3_done")
    A("s_endpgm")

def descriptor(name, vgpr, sgpr=96):
    acc = (vgpr + 3) // 4 * 4
    return f""".amdhsa_kernel {name}
  .amdhsa_next_free_vgpr {vgpr}
  .amdhsa_next_free_sgpr {sgpr}
  .amdhsa_accum_offset {acc}
  .amdhsa_group_segment_fixed_size 0
  .amdhsa_kernarg_size 144
  .amdhsa_user_sgpr_count 2
  .amdhsa_user_sgpr_kernarg_segment_ptr 1
  .amdhsa_system_sgpr_workgroup_id_x 1
.end_amdhsa_kernel
"""

def main(out):
    ref = open(f"cdna_kernels/{NAME}.s.ref").read().splitlines()
    head = [l for l in ref if l.startswith(";") and "@launch" not in l]
    A = Asm()
    gen_k1(A); gen_k2(A); gen_k3(A)
    txt = "\n".join(head) + "\n"
    txt += f"; @launch kernel=k1_kernel grid=({K1_GRID},1,1) block=(256,1,1) lds={K1_LDS}\n"
    txt += f"; @launch kernel=k2_kernel grid=({K2_GRID},1,1) block=(256,1,1) lds={K2_LDS}\n"
    txt += f"; @launch kernel=k3_kernel grid=({K3_GRID},1,1) block=(256,1,1) lds={K3_LDS}\n"
    txt += '.amdgcn_target "amdgcn-amd-amdhsa--gfx950"\n.text\n'
    for k in ("k1_kernel", "k2_kernel", "k3_kernel"):
        txt += f".globl {k}\n.type {k},@function\n"
    txt += A.text()
    txt += '.section .rodata,"a"\n.p2align 6\n'
    txt += descriptor("k1_kernel", 80) + ".p2align 6\n"
    txt += descriptor("k2_kernel", 244) + ".p2align 6\n"
    txt += descriptor("k3_kernel", 144)
    open(out, "w").write(txt)

if __name__ == "__main__":
    main(sys.argv[1] if len(sys.argv) > 1 else f"cdna_kernels/{NAME}.s")
```
